```python
import torch

def _softmax(x, axis=-1):
    return torch.softmax(x, dim=axis)

def _gelu(x):
    return torch.nn.functional.gelu(x, approximate='tanh')

def _silu(x):
    return torch.nn.functional.silu(x)

def _sigmoid(x):
    return torch.sigmoid(x)

def _layernorm(x, axis=-1, eps=1e-05):
    m = x.mean(dim=axis, keepdim=True)
    v = x.var(dim=axis, keepdim=True, unbiased=False)
    return (x - m) / torch.sqrt(v + eps)

def _scatter_add(tgt, idx, src, axis=0):
    return tgt.clone().index_add_(axis, idx, src)

def _segment_sum(src, seg, n):
    out = torch.zeros((n,) + src.shape[1:], dtype=src.dtype)
    return out.index_add_(0, seg, src)

def _pad(x, pw):
    flat = tuple((v for pair in reversed(pw) for v in pair))
    return torch.nn.functional.pad(x, flat)
kernel_name = 'gather_scatter__molecular_angular_painn__graph'

def setup_inputs():

    _w = lambda a: (lambda t: t.to(torch.bfloat16) if t.is_floating_point() else t)(torch.as_tensor(a))
    N, deg, D = (10000, 16, 256)
    n_rbf = max(4, 4)
    E = N * deg
    cutoff = 5.0
    freqs = (torch.arange(1, n_rbf + 1) * torch.pi / cutoff).to(float)
    return {'sv': _w((lambda *s: torch.randn(*s, dtype=torch.bfloat16) * 0.4)(N, 4, D) * 0.3), 'pos': _w((lambda *s: torch.randn(*s, dtype=torch.bfloat16) * 3.2)(N, 3) * 1.2), 'src': _w((lambda lo, hi, *s: torch.randint(lo, hi, s))(0, N, E).to(torch.int64)), 'dst': _w((lambda lo, hi, *s: torch.randint(lo, hi, s))(0, N, E).to(torch.int64)), 'freqs': _w(freqs), 'w_phi1': _w((lambda *s: torch.randn(*s, dtype=torch.bfloat16) * 3.2)(D, D) / D ** 0.5), 'w_phi2': _w((lambda *s: torch.randn(*s, dtype=torch.bfloat16) * 3.2)(D, 3 * D) / D ** 0.5), 'w_rbf': _w((lambda *s: torch.randn(*s, dtype=torch.bfloat16) * 3.2)(n_rbf, 3 * D) / n_rbf ** 0.5)}

def reference(sv, pos, src, dst, freqs, w_phi1, w_phi2, w_rbf):
    N, _, D = sv.shape
    E = src.shape[0]
    PI, cutoff = (3.141592653589793, 5.0)
    s, v = (sv[:, 0, :].clone(), sv[:, 1:, :].clone())
    r_vec = pos[src] - pos[dst]
    d = torch.sqrt((r_vec * r_vec).sum(-1) + 1e-08)
    r_hat = r_vec / d[:, None]
    rbf = torch.sin(d[:, None] * freqs[None, :]) / d[:, None]
    fcut = 0.5 * (torch.cos(PI * d / cutoff) + 1.0)
    fcut = torch.where(d < cutoff, fcut, 0.0 * d)
    Wf = rbf @ w_rbf * fcut[:, None]
    phi = (_silu(s @ w_phi1) @ w_phi2)[src]
    m = phi * Wf
    m_s, m_vv, m_vr = (m[:, :D].clone(), m[:, D:2 * D].clone(), m[:, 2 * D:].clone())
    ds = _segment_sum(m_s, dst, N)
    dv_e = m_vv[:, None, :] * v[src] + m_vr[:, None, :] * r_hat[:, :, None]
    dv = _segment_sum(dv_e.reshape(E, 3 * D), dst, N).reshape(N, 3, D)
    return sv + torch.concatenate([ds[:, None, :], dv], axis=1)
```

```python
import sys
P = dict(DEPTH=4, ST_PHI='', ST_OUT='', FILL=6, K2WAVES=4)
for a in sys.argv[2:]:
    k, v = a.split('=')
    P[k] = int(v) if v.lstrip('-').isdigit() else v
DEPTH = P['DEPTH']
N, E, D = 10000, 160000, 256
CAP = 32
PHI_BYTES = N * 768 * 2
WS_CNT = 0x1000000
WS_WPK = 0x1010000
WS_BKT = 0x1100000
WS_OVF = 0x2000000
NWG1 = 237
out = []
def e(s): out.append('    ' + s)
def L(s): out.append(s + ':')
def srd(s, lo, hi, nbytes):
    e(f's_mov_b32 s{s}, s{lo}'); e(f's_and_b32 s{s+1}, s{hi}, 0xffff')
    e(f's_mov_b32 s{s+2}, {nbytes}'); e(f's_mov_b32 s{s+3}, 0x20000')
def srd_off(s, lo, hi, off, nbytes):
    e(f's_add_u32 s{s}, s{lo}, {off}'); e(f's_addc_u32 s{s+1}, s{hi}, 0')
    e(f's_and_b32 s{s+1}, s{s+1}, 0xffff')
    e(f's_mov_b32 s{s+2}, {nbytes}'); e(f's_mov_b32 s{s+3}, 0x20000')

hdr = open('gather_scatter__molecular_angular_painn__graph.s.ref').read().split('\n')
for l in hdr:
    if l.startswith('; @launch') or l.startswith('; Override'): break
    out.append(l)
K1 = 'painn_prep_kernel'
K2 = 'gather_scatter__molecular_angular_painn__graph_kernel'
K2W = P['K2WAVES']
out.append(f'; @launch kernel={K1} grid=({NWG1},1,1) block=(256,1,1) lds=131072')
out.append(f'; @launch kernel={K2} grid=({N//K2W},1,1) block=({64*K2W},1,1) lds=0')
out.append('.amdgcn_target "amdgcn-amd-amdhsa--gfx950"')
out.append('.text')
def kstart(name):
    out.append(f'.globl {name}'); out.append('.p2align 8'); out.append(f'.type {name},@function'); L(name)

vm = []
def vmi(tag): vm.append(tag)
def vm_wait_for(tag):
    idx = max(i for i, t in enumerate(vm) if t == tag)
    n = len(vm) - 1 - idx
    assert n < 64, n
    e(f's_waitcnt vmcnt({n})')

kstart(K1)
S_SV, S_W1, S_W2, S_PHI, S_POS, S_CNT, S_BKT, S_SRC, S_DST = 8, 12, 16, 20, 24, 28, 32, 36, 40
S_OVF, S_DBG, S_WR, S_WPK = 44, 48, 52, 56
e(f's_cmp_ge_u32 s2, {NWG1}'); e('s_cbranch_scc1 K1_end')
e('s_load_dwordx4 s[60:63], s[0:1], 0')
e('s_load_dwordx4 s[64:67], s[0:1], 16')
e('s_load_dwordx4 s[68:71], s[0:1], 32')
e('s_load_dwordx4 s[72:75], s[0:1], 48')
e('s_load_dwordx4 s[76:79], s[0:1], 72')
V_LANE, V_T0, V_T1, V_T2 = 1, 2, 3, 4
e(f'v_and_b32 v{V_LANE}, 63, v0')
e('v_lshrrev_b32 v2, 6, v0'); e('s_nop 0'); e('v_readfirstlane_b32 s4, v2')
e('s_mul_hi_u32 s5, s2, 0x55555556')
e('s_mul_i32 s6, s5, 3'); e('s_sub_u32 s6, s2, s6')
e('s_waitcnt lgkmcnt(0)')
e('s_load_dwordx2 s[80:81], s[68:69], 0')
srd(S_SV, 60, 61, N * 2048); srd(S_POS, 62, 63, N * 6)
srd(S_SRC, 64, 65, E * 4); srd(S_DST, 66, 67, E * 4)
srd(S_W1, 70, 71, 256 * 512); srd(S_W2, 72, 73, 256 * 1536); srd(S_WR, 74, 75, 4 * 1536)
srd(S_DBG, 76, 77, 256); srd(S_PHI, 78, 79, PHI_BYTES)
srd_off(S_CNT, 78, 79, WS_CNT, (N + 16) * 4); srd_off(S_WPK, 78, 79, WS_WPK, 6144)
srd_off(S_BKT, 78, 79, WS_BKT, N * CAP * 32); srd_off(S_OVF, 78, 79, WS_OVF, E * 32)
V_Z = 8
e('s_cmp_ge_u32 s2, 16'); e('s_cbranch_scc1 K1_nozero')
e('s_cmp_lg_u32 s4, 0'); e('s_cbranch_scc1 K1_nozero')
for i in range(4): e(f'v_mov_b32 v{V_Z+i}, 0')
e('s_mul_i32 s7, s2, 2560')
e(f'v_lshl_add_u32 v2, v{V_LANE}, 4, s7')
e(f'buffer_store_dwordx4 v[{V_Z}:{V_Z+3}], v2, s[{S_CNT}:{S_CNT+3}], 0 offen sc0 sc1')
e(f'buffer_store_dwordx4 v[{V_Z}:{V_Z+3}], v2, s[{S_CNT}:{S_CNT+3}], 0 offen offset:1024 sc0 sc1')
e(f'v_cmp_gt_u32 vcc, 32, v{V_LANE}'); e('s_and_saveexec_b64 s[82:83], vcc')
e(f'buffer_store_dwordx4 v[{V_Z}:{V_Z+3}], v2, s[{S_CNT}:{S_CNT+3}], 0 offen offset:2048 sc0 sc1')
e('s_waitcnt vmcnt(0)')
e(f'v_cmp_eq_u32 vcc, 0, v{V_LANE}'); e('s_and_b64 exec, exec, vcc')
e('v_mov_b32 v2, 0'); e('v_mov_b32 v3, 1')
e(f'buffer_atomic_add v3, v2, s[{S_DBG}:{S_DBG+3}], 0 offen sc1')
e('s_mov_b64 exec, s[82:83]')
L('K1_nozero')
e('s_cmp_lg_u32 s2, 16'); e('s_cbranch_scc1 K1_nopack')
e('s_cmp_ge_u32 s4, 3'); e('s_cbranch_scc1 K1_nopack')
e('s_lshl_b32 s7, s4, 9')
e(f'v_lshl_add_u32 v2, v{V_LANE}, 3, s7')
e('s_movk_i32 s82, 3072')
for j in range(4): e(f'buffer_load_dwordx2 v[{8+2*j}:{9+2*j}], v2, s[{S_WR}:{S_WR+3}], {"0" if j < 2 else "s82"} offen offset:{(j%2)*1536}')
e('s_mov_b32 s82, 0x05040100'); e('s_mov_b32 s83, 0x07060302')
e('s_lshl_b32 s7, s4, 11')
e(f'v_lshl_add_u32 v2, v{V_LANE}, 4, s7')
e('s_waitcnt vmcnt(0)')
for jp in range(2):
    a, b = 8 + 4 * jp, 10 + 4 * jp
    for c in range(4):
        e(f'v_perm_b32 v{16+c}, v{b+(c>>1)}, v{a+(c>>1)}, s{82+(c&1)}')
    e(f'buffer_store_dwordx4 v[16:19], v2, s[{S_WPK}:{S_WPK+3}], 0 offen offset:{jp*1024}')
    e('s_nop 1')
L('K1_nopack')
NEJ = 3
V_ES, V_ED = 128, 131
e('v_lshlrev_b32 v2, 2, v0')
e('s_lshl_b32 s7, s2, 10')
for j in range(NEJ):
    e(f's_add_u32 s82, s7, {j*NWG1*1024}'); e('v_add_u32 v3, s82, v2')
    e(f'buffer_load_dword v{V_ES+j}, v3, s[{S_SRC}:{S_SRC+3}], 0 offen'); vmi('idx')
    e(f'buffer_load_dword v{V_ED+j}, v3, s[{S_DST}:{S_DST+3}], 0 offen'); vmi('idx')
V_S = 64
e(f'v_and_b32 v2, 31, v{V_LANE}')
e('s_lshl_b32 s7, s5, 7'); e('s_lshl_b32 s82, s4, 5'); e('s_add_u32 s7, s7, s82')
e('v_add_u32 v5, s7, v2')
e(f'v_lshrrev_b32 v3, 5, v{V_LANE}')
e('v_lshlrev_b32 v2, 11, v5'); e('v_lshl_add_u32 v2, v3, 4, v2')
for j in range(16):
    e(f'buffer_load_dwordx4 v[{V_S+4*j}:{V_S+4*j+3}], v2, s[{S_SV}:{S_SV+3}], 0 offen offset:{32*j}'); vmi('S')
V_PA = 6
e('s_mov_b32 s82, 1536'); e(f'v_mul_lo_u32 v{V_PA}, v5, s82')
e(f'v_lshl_add_u32 v{V_PA}, v3, 6, v{V_PA}')
e('s_lshl_b32 s82, s6, 9'); e(f'v_add_u32 v{V_PA}, s82, v{V_PA}')
V_D1, V_D2 = 7, 8
e(f'v_lshrrev_b32 v2, 4, v{V_LANE}'); e('v_and_b32 v2, 1, v2'); e('v_mul_u32_u24 v2, 6, v2')
e(f'v_and_b32 v4, 7, v{V_LANE}'); e('v_xor_b32 v2, v2, v4'); e('v_lshlrev_b32 v2, 4, v2')
e(f'v_lshrrev_b32 v4, 3, v{V_LANE}')
e(f'v_lshl_add_u32 v{V_D1}, v4, 9, v2')
e('v_mul_u32_u24 v4, 1536, v4'); e(f'v_add_u32 v{V_D2}, v4, v2')
e('s_lshl_b32 s84, s4, 13')
e('s_lshl_b32 s85, s4, 15')
e('s_mul_i32 s86, s4, 98304')
e('s_lshl_b32 s82, s6, 9'); e('s_add_u32 s86, s86, s82')
def dma(c):
    slot = c % 4
    for i in range(8):
        e(f's_add_u32 m0, s84, {slot*32768 + i*1024}')
        if c < 4:
            e(f's_add_u32 s87, s85, {i*8*512 + c*128}')
            e(f'buffer_load_dwordx4 v{V_D1}, s[{S_W1}:{S_W1+3}], s87 offen lds')
        else:
            e(f's_add_u32 s87, s86, {i*8*1536 + (c-4)*128}')
            e(f'buffer_load_dwordx4 v{V_D2}, s[{S_W2}:{S_W2+3}], s87 offen lds')
        vmi(f'dma{c}')
for c in range(4): dma(c)
V_A1 = [9, 10]; V_A2 = [11, 12]
e(f'v_lshrrev_b32 v2, 2, v{V_LANE}'); e('v_and_b32 v2, 3, v2')
e(f'v_and_b32 v4, 3, v{V_LANE}')
e(f'v_lshrrev_b32 v13, 4, v{V_LANE}'); e('v_and_b32 v13, 1, v13')
e('v_lshrrev_b32 v14, 1, v2'); e('v_mul_u32_u24 v14, 6, v14')
e('v_lshlrev_b32 v15, 7, v2')
for T in range(2):
    e('v_lshl_add_u32 v16, v13, 2, v4'); e('v_lshrrev_b32 v17, 1, v16'); e(f'v_add_u32 v17, {4*T}, v17')
    e('v_xor_b32 v17, v17, v14'); e('v_and_b32 v16, 1, v16'); e('v_lshlrev_b32 v16, 3, v16')
    e('v_lshl_add_u32 v16, v17, 4, v16'); e('v_add_u32 v16, v16, v15')
    e(f'v_lshl_add_u32 v{V_A1[T]}, v3, 10, v16')
    e('v_and_b32 v16, 1, v4'); e('v_lshl_add_u32 v16, v16, 2, v13'); e(f'v_add_u32 v16, {2*T}, v16')
    e('v_xor_b32 v16, v16, v14'); e('v_lshrrev_b32 v17, 1, v4'); e('v_lshlrev_b32 v17, 3, v17')
    e('v_lshl_add_u32 v16, v16, 4, v17'); e('v_add_u32 v16, v16, v15')
    e(f'v_lshl_add_u32 v{V_A2[T]}, v3, 9, v16')

V_PS, V_PD = 136, 144
vm_wait_for('idx')
for j in range(NEJ):
    for (vi, vp) in ((V_ES + j, V_PS + 2 * j), (V_ED + j, V_PD + 2 * j)):
        e(f'v_mul_u32_u24 v2, 6, v{vi}'); e('v_and_b32 v2, -4, v2')
        e(f'buffer_load_dwordx2 v[{vp}:{vp+1}], v2, s[{S_POS}:{S_POS+3}], 0 offen'); vmi('pos')
L('K1_poll')
e('v_mov_b32 v2, 0')
e(f'buffer_load_dword v4, v2, s[{S_DBG}:{S_DBG+3}], 0 offen sc0 sc1')
e('s_waitcnt vmcnt(0)')
e('v_readfirstlane_b32 s82, v4'); e('s_cmp_ge_u32 s82, 16'); e('s_cbranch_scc1 K1_polled')
e('s_sleep 4'); e('s_branch K1_poll')
L('K1_polled')
e('s_waitcnt lgkmcnt(0)')
del vm[:]
e('s_lshl_b32 s88, s80, 16'); e('s_and_b32 s89, s80, 0xffff0000')
e('s_lshl_b32 s90, s81, 16'); e('s_and_b32 s91, s81, 0xffff0000')
e('s_mov_b32 s92, 0x3e22f983')
e('s_mov_b32 s93, 0x40490fdb')
e('s_mov_b32 s94, 0x3e4ccccd')
e('s_mov_b32 s95, 0x40a00000')
e('s_mov_b32 s96, 0x322bcc77')
def rb(v):
    e(f'v_cvt_pk_bf16_f32 v{v}, v{v}, v{v}'); e(f'v_and_b32 v{v}, 0xffff0000, v{v}')
R = 152
T = 160
for j in range(NEJ):
    if j == 2:
        e(f's_cmp_ge_u32 s2, {625 - 2*NWG1}'); e('s_cbranch_scc1 K1_edone')
    for (vi, vp, o) in ((V_ES + j, V_PS + 2 * j, T), (V_ED + j, V_PD + 2 * j, T + 3)):
        e(f'v_and_b32 v2, 1, v{vi}'); e('v_lshlrev_b32 v2, 4, v2')
        e(f'v_lshrrev_b64 v[{vp}:{vp+1}], v2, v[{vp}:{vp+1}]')
        e(f'v_lshlrev_b32 v{o}, 16, v{vp}'); e(f'v_and_b32 v{o+1}, 0xffff0000, v{vp}'); e(f'v_lshlrev_b32 v{o+2}, 16, v{vp+1}')
    for k in range(3):
        e(f'v_sub_f32 v{T+k}, v{T+k}, v{T+3+k}'); rb(T + k)
    for k in range(3):
        e(f'v_mul_f32 v{T+3+k}, v{T+k}, v{T+k}'); rb(T + 3 + k)
    e(f'v_add_f32 v{T+3}, v{T+3}, v{T+4}'); e(f'v_add_f32 v{T+3}, v{T+3}, v{T+5}'); rb(T + 3)
    e(f'v_add_f32 v{T+3}, s96, v{T+3}'); rb(T + 3)
    e(f'v_sqrt_f32 v{T+3}, v{T+3}'); e('s_nop 0'); rb(T + 3)
    e(f'v_rcp_f32 v{T+4}, v{T+3}'); e('s_nop 0')
    for k in range(3):
        e(f'v_mul_f32 v{R+3+k}, v{T+k}, v{T+4}'); rb(R + 3 + k)
    e(f'v_mul_f32 v{T+5}, s93, v{T+3}'); rb(T + 5)
    e(f'v_mul_f32 v{T+5}, s94, v{T+5}'); rb(T + 5)
    e(f'v_mul_f32 v{T+5}, s92, v{T+5}'); e(f'v_fract_f32 v{T+5}, v{T+5}'); e(f'v_cos_f32 v{T+5}, v{T+5}'); e('s_nop 0'); rb(T + 5)
    e(f'v_add_f32 v{T+5}, 1.0, v{T+5}'); rb(T + 5)
    e(f'v_mul_f32 v{T+5}, 0.5, v{T+5}'); rb(T + 5)
    for q in range(4):
        x = T + 6 + q
        e(f'v_mul_f32 v{x}, s{88+q}, v{T+3}'); rb(x)
        e(f'v_mul_f32 v{x}, s92, v{x}'); e(f'v_fract_f32 v{x}, v{x}'); e(f'v_sin_f32 v{x}, v{x}'); e('s_nop 0'); rb(x)
        e(f'v_mul_f32 v{x}, v{x}, v{T+4}'); rb(x)
        e(f'v_mul_f32 v{x}, v{x}, v{T+5}')
    e(f'v_cvt_pk_bf16_f32 v{R+1}, v{T+6}, v{T+7}'); e(f'v_cvt_pk_bf16_f32 v{R+2}, v{T+8}, v{T+9}')
    e(f'v_mov_b32 v{R}, v{V_ES+j}'); e(f'v_mov_b32 v{R+6}, v{V_ED+j}'); e(f'v_mov_b32 v{R+7}, 0')
    e(f'v_cmp_gt_f32 vcc, s95, v{T+3}')
    e('s_and_saveexec_b64 s[82:83], vcc')
    e(f's_cbranch_execz K1_eskip{j}')
    e(f'v_lshlrev_b32 v2, 2, v{V_ED+j}'); e('v_mov_b32 v4, 1')
    e(f'buffer_atomic_add v4, v2, s[{S_CNT}:{S_CNT+3}], 0 offen sc0 sc1')
    e('s_waitcnt vmcnt(0)')
    e(f'v_cmp_gt_u32 vcc, {CAP}, v4')
    e('s_and_saveexec_b64 s[98:99], vcc')
    e(f'v_lshlrev_b32 v2, 10, v{V_ED+j}'); e('v_lshl_add_u32 v2, v4, 5, v2')
    e(f'buffer_store_dwordx4 v[{R}:{R+3}], v2, s[{S_BKT}:{S_BKT+3}], 0 offen')
    e(f'buffer_store_dwordx4 v[{R+4}:{R+7}], v2, s[{S_BKT}:{S_BKT+3}], 0 offen offset:16')
    e('s_andn2_b64 exec, s[98:99], exec')
    e(f's_cbranch_execz K1_eskip{j}')
    e(f'v_mov_b32 v2, {N*4}'); e('v_mov_b32 v4, 1')
    e(f'buffer_atomic_add v4, v2, s[{S_CNT}:{S_CNT+3}], 0 offen sc0 sc1')
    e('s_waitcnt vmcnt(0)')
    e('v_lshlrev_b32 v2, 5, v4')
    e(f'buffer_store_dwordx4 v[{R}:{R+3}], v2, s[{S_OVF}:{S_OVF+3}], 0 offen')
    e(f'buffer_store_dwordx4 v[{R+4}:{R+7}], v2, s[{S_OVF}:{S_OVF+3}], 0 offen offset:16')
    L(f'K1_eskip{j}')
    e('s_mov_b64 exec, s[82:83]')
    e('s_nop 1')
L('K1_edone')
e('s_waitcnt vmcnt(0)')
del vm[:]
for c in range(4):
    vm.extend([f'dma{c}'] * 0)
V_H, V_ACC, V_AF, V_ET = 128, 192, 224, 240
NPF = 3
steps = [(c, Tt, j) for c in range(8) for Tt in range(2) for j in range(16)]
def aread(idx):
    c, Tt, j = steps[idx]
    slot = c % 4; r = V_AF + 4 * (idx % 4)
    base = V_A1[Tt] if c < 4 else V_A2[Tt]
    us = 512 if c < 4 else 1024
    if slot >= 2:
        base = base + 20 - 9 if False else base
    offs = [slot * 32768 + j * 2048 + u * us for u in range(2)]
    if slot >= 2:
        base = {9: 20, 10: 21, 11: 22, 12: 23}[base]; offs = [o - 65536 for o in offs]
    return [f'ds_read_b64_tr_b16 v[{r}:{r+1}], v{base} offset:{offs[0]}',
            f'ds_read_b64_tr_b16 v[{r+2}:{r+3}], v{base} offset:{offs[1]}']
for k in range(4): e(f'v_add_u32 v{20+k}, 0x10000, v{9+k}')
e('s_mov_b32 s88, 0xbfb8aa3b')
def epilogue(tidx):
    c, Tt = tidx // 2, tidx % 2
    acc = V_ACC + 16 * (tidx % 2)
    f = []
    if c < 4:
        for p in range(8):
            x0, x1 = acc + 2 * p, acc + 2 * p + 1
            t0, t1 = V_ET + 2 * (p % 2), V_ET + 2 * (p % 2) + 1
            f += [f'v_mul_f32 v{t0}, s88, v{x0}', f'v_mul_f32 v{t1}, s88, v{x1}',
                  f'v_exp_f32 v{t0}, v{t0}', f'v_exp_f32 v{t1}, v{t1}',
                  f'v_add_f32 v{t0}, 1.0, v{t0}', f'v_add_f32 v{t1}, 1.0, v{t1}',
                  f'v_rcp_f32 v{t0}, v{t0}', f'v_rcp_f32 v{t1}, v{t1}',
                  f'v_mul_f32 v{t0}, v{x0}, v{t0}', f'v_mul_f32 v{t1}, v{x1}, v{t1}',
                  f'v_cvt_pk_bf16_f32 v{V_H + 8*tidx + p}, v{t0}, v{t1}']
    else:
        o = V_ET + 8 * (tidx % 2) if False else V_ET
        for q in range(2):
            for p in range(4):
                f.append(f'v_cvt_pk_bf16_f32 v{V_ET + 4*q + p + 8*(tidx%2)}, v{acc + 8*q + 2*p}, v{acc + 8*q + 2*p + 1}')
            b = V_ET + 4 * q + 8 * (tidx % 2)
            f.append(('ST', f'buffer_store_dwordx4 v[{b}:{b+3}], v{V_PA}, s[{S_PHI}:{S_PHI+3}], 0 offen offset:{(c-4)*128 + Tt*32 + q*16} {P["ST_PHI"]}'))
    return f
def emit_f(x):
    if isinstance(x, tuple): e(x[1]); vmi('st')
    else: e(x)
pending = []
lg = 0
for idx, (c, Tt, j) in enumerate(steps):
    tidx = 2 * c + Tt
    if Tt == 0 and j == 0:
        if c == 0:
            e('s_waitcnt vmcnt(0)')
        else:
            vm_wait_for(f'dma{c}') if f'dma{c}' in vm else None
        e('s_barrier')
        if 1 <= c <= 4: dma(c + 3)
        for k in range(NPF):
            for s in aread(idx + k): e(s)
    nxt = idx + NPF
    same_chunk = nxt < len(steps) and steps[nxt][0] == c
    rem_in_chunk = 32 - (Tt * 16 + j) - 1
    younger = min(NPF - 1, rem_in_chunk)
    e(f's_waitcnt lgkmcnt({2*younger})')
    acc = V_ACC + 16 * (tidx % 2); a = V_AF + 4 * (idx % 4)
    bsrc = (V_S + 4 * j) if c < 4 else (V_H + 4 * j)
    cin = '0' if j == 0 else f'v[{acc}:{acc+15}]'
    if c == 4 and Tt == 0 and j == 0:
        pass
    e(f'v_mfma_f32_32x32x16_bf16 v[{acc}:{acc+15}], v[{a}:{a+3}], v[{bsrc}:{bsrc+3}], {cin}')
    if same_chunk:
        for s in aread(nxt): e(s)
    if j == 0 and tidx > 0:
        assert not pending
        pending = epilogue(tidx - 1)
    if j >= 2 or (j == 15):
        n = P['FILL'] if j < 15 else len(pending)
        for _ in range(min(n, len(pending))): emit_f(pending.pop(0))
    if tidx == 7 and j == 15:
        e('s_nop 15')
        for x in epilogue(7): emit_f(x)
        e('s_nop 1')
    if tidx == 8 and j == 0: pending = []
e('s_nop 15')
for x in epilogue(15): emit_f(x)
L('K1_end')
e('s_endpgm')

kstart(K2)
NRND = (DEPTH + 1) // 2
e(f's_cmp_ge_u32 s2, {N // K2W}'); e('s_cbranch_scc1 K2_end')
e('s_load_dwordx2 s[4:5], s[0:1], 0')
e('s_load_dwordx2 s[6:7], s[0:1], 64')
e('s_load_dwordx2 s[8:9], s[0:1], 80')
e('v_lshrrev_b32 v1, 6, v0'); e('v_and_b32 v0, 63, v0'); e('v_readfirstlane_b32 s3, v1')
e(f's_mul_i32 s2, s2, {K2W}'); e('s_add_u32 s2, s2, s3')
e('v_lshlrev_b32 v1, 3, v0')
e('v_lshlrev_b32 v2, 4, v0')
e('s_waitcnt lgkmcnt(0)')
e(f's_add_u32 s10, s8, {WS_CNT}'); e('s_addc_u32 s11, s9, 0')
e(f's_add_u32 s12, s8, {WS_BKT}'); e('s_addc_u32 s13, s9, 0')
e('s_lshl_b32 s14, s2, 2'); e('s_lshl_b32 s15, s2, 10')
e('s_load_dword s16, s[10:11], s14')
RS = 40
for i in range(0, DEPTH, 2):
    if i + 1 < DEPTH: e(f's_load_dwordx16 s[{RS+8*i}:{RS+8*i+15}], s[12:13], s15 offset:{32*i}')
    else: e(f's_load_dwordx8 s[{RS+8*i}:{RS+8*i+7}], s[12:13], s15 offset:{32*i}')
SV, OUT, PHI, WPK = 20, 24, 28, 32
srd(SV, 4, 5, N * 2048); srd(OUT, 6, 7, N * 2048); srd(PHI, 8, 9, PHI_BYTES); srd_off(WPK, 8, 9, WS_WPK, 6144)
e('s_lshl_b32 s17, s2, 11')
VW, VACC, VB, VT = 4, 28, 44, 44 + 12 * DEPTH
for g in range(4):
    e(f'buffer_load_dwordx2 v[{VB+2*g}:{VB+2*g+1}], v1, s[{SV}:{SV+3}], s17 offen offset:{512*g}')
e('s_waitcnt lgkmcnt(0)')
e('s_cmp_eq_u32 s16, 0'); e('s_cbranch_scc0 K2_some')
e('s_waitcnt vmcnt(0)')
for g in range(4):
    e(f'buffer_store_dwordx2 v[{VB+2*g}:{VB+2*g+1}], v1, s[{OUT}:{OUT+3}], s17 offen offset:{512*g} {P["ST_OUT"]}')
e('s_endpgm')
L('K2_some')
for q in range(6):
    e(f'buffer_load_dwordx4 v[{VW+4*q}:{VW+4*q+3}], v2, s[{WPK}:{WPK+3}], 0 offen offset:{1024*(q%4)}' if q < 4 else
      f'buffer_load_dwordx4 v[{VW+4*q}:{VW+4*q+3}], v2, s[{WPK}:{WPK+3}], s19 offen offset:{1024*(q%4)}')
    if q == 0: e('s_movk_i32 s19, 4096')
e('s_waitcnt vmcnt(6)')
for g in range(4):
    for p in range(2):
        e(f'v_lshlrev_b32 v{VACC+4*g+2*p}, 16, v{VB+2*g+p}'); e(f'v_and_b32 v{VACC+4*g+2*p+1}, 0xffff0000, v{VB+2*g+p}')
e(f's_min_u32 s18, s16, {CAP}')
def issue(s):
    r = RS + 8 * s; b = VB + 12 * s
    e(f's_mul_i32 s34, s{r}, 1536'); e(f's_lshl_b32 s35, s{r}, 11')
    for g in range(3): e(f'buffer_load_dwordx2 v[{b+2*g}:{b+2*g+1}], v1, s[{PHI}:{PHI+3}], s34 offen offset:{512*g}')
    for g in range(3): e(f'buffer_load_dwordx2 v[{b+6+2*g}:{b+6+2*g+1}], v1, s[{SV}:{SV+3}], s35 offen offset:{512*(g+1)}')
def process(r, b):
    t = VT
    def dots(g, o):
        for c in range(4): e(f'v_dot2_f32_bf16 v{o+c}, v{VW+8*g+c}, s{r+1}, 0')
        for c in range(4): e(f'v_dot2_f32_bf16 v{o+c}, v{VW+8*g+4+c}, s{r+2}, v{o+c}')
    def unpack(src, o):
        for p in range(2):
            e(f'v_lshlrev_b32 v{o+2*p}, 16, v{src+p}'); e(f'v_and_b32 v{o+2*p+1}, 0xffff0000, v{src+p}')
    dots(0, t); unpack(b, t + 4)
    for c in range(4): e(f'v_fmac_f32 v{VACC+c}, v{t+c}, v{t+4+c}')
    dots(2, t); unpack(b + 4, t + 4)
    for c in range(4): e(f'v_mul_f32 v{t+c}, v{t+c}, v{t+4+c}')
    for k in range(3):
        for c in range(4): e(f'v_fmac_f32 v{VACC+4+4*k+c}, s{r+3+k}, v{t+c}')
    dots(1, t); unpack(b + 2, t + 4)
    for c in range(4): e(f'v_mul_f32 v{t+c}, v{t+c}, v{t+4+c}')
    for k in range(3):
        unpack(b + 6 + 2 * k, t + 4)
        for c in range(4): e(f'v_fmac_f32 v{VACC+4+4*k+c}, v{t+c}, v{t+4+c}')
L('K2_round')
for m in range(1, DEPTH):
    e(f's_cmp_eq_u32 s18, {m}'); e(f's_cbranch_scc1 K2_I{m-1}')
for s in range(DEPTH - 1, -1, -1):
    L(f'K2_I{s}'); issue(s)
for m in range(1, DEPTH):
    e(f's_cmp_eq_u32 s18, {m}'); e(f's_cbranch_scc1 K2_B{m-1}')
for s in range(DEPTH - 1, -1, -1):
    L(f'K2_B{s}'); e(f's_waitcnt vmcnt({6*s})'); process(RS + 8 * s, VB + 12 * s)
e(f's_cmp_le_u32 s18, {DEPTH}'); e('s_cbranch_scc1 K2_bdone')
e(f's_sub_u32 s18, s18, {DEPTH}'); e(f's_add_u32 s15, s15, {32*DEPTH}')
for i in range(0, DEPTH, 2):
    if i + 1 < DEPTH: e(f's_load_dwordx16 s[{RS+8*i}:{RS+8*i+15}], s[12:13], s15 offset:{32*i}')
    else: e(f's_load_dwordx8 s[{RS+8*i}:{RS+8*i+7}], s[12:13], s15 offset:{32*i}')
e('s_waitcnt lgkmcnt(0)')
e('s_branch K2_round')
L('K2_bdone')
e(f's_cmp_le_u32 s16, {CAP}'); e('s_cbranch_scc1 K2_fin')
e(f's_load_dword s18, s[10:11], {N*4}')
e(f's_add_u32 s12, s8, {WS_OVF}'); e('s_addc_u32 s13, s9, 0')
e('s_mov_b32 s15, 0')
e('s_waitcnt lgkmcnt(0)')
e('s_lshl_b32 s18, s18, 5')
L('K2_ovf')
e('s_cmp_ge_u32 s15, s18'); e('s_cbranch_scc1 K2_fin')
e(f's_load_dwordx8 s[{RS}:{RS+7}], s[12:13], s15')
e('s_add_u32 s15, s15, 32')
e('s_waitcnt lgkmcnt(0)')
e(f's_cmp_eq_u32 s{RS+6}, s2'); e('s_cbranch_scc0 K2_ovf')
issue(0); e('s_waitcnt vmcnt(0)'); process(RS, VB)
e('s_branch K2_ovf')
L('K2_fin')
for g in range(4):
    for p in range(2):
        e(f'v_cvt_pk_bf16_f32 v{VT+2*(g%2)+p}, v{VACC+4*g+2*p}, v{VACC+4*g+2*p+1}')
    e(f'buffer_store_dwordx2 v[{VT+2*(g%2)}:{VT+2*(g%2)+1}], v1, s[{OUT}:{OUT+3}], s17 offen offset:{512*g} {P["ST_OUT"]}')
    if g == 1: e('s_nop 1')
L('K2_end')
e('s_endpgm')

out.append('.section .rodata,"a"')
def desc(name, vg, sg):
    out.append('.p2align 6'); out.append(f'.amdhsa_kernel {name}')
    out.append(f'  .amdhsa_next_free_vgpr {vg}'); out.append(f'  .amdhsa_next_free_sgpr {sg}')
    out.append(f'  .amdhsa_accum_offset {(vg+3)//4*4}')
    out.append('  .amdhsa_group_segment_fixed_size 0'); out.append('  .amdhsa_kernarg_size 88')
    out.append('  .amdhsa_user_sgpr_count 2'); out.append('  .amdhsa_user_sgpr_kernarg_segment_ptr 1')
    out.append('  .amdhsa_system_sgpr_workgroup_id_x 1'); out.append('.end_amdhsa_kernel')
desc(K1, 256, 102)
desc(K2, VT + 8, RS + 8 * DEPTH)
open(sys.argv[1], 'w').write('\n'.join(out) + '\n')
print('K2 vgprs', VT + 8, 'lines', len(out))
```

```python
import sys
P = dict(NOEDGE=0, NOGEMM=0, NOATOM=0, STAMP=0, RST=0, DEPTH=4, ST_PHI='', ST_OUT='', FILL=6, FILL2=6, K2WAVES=4)
for a in sys.argv[2:]:
    k, v = a.split('=')
    P[k] = int(v) if v.lstrip('-').isdigit() else v
DEPTH = P['DEPTH']
N, E, D = 10000, 160000, 256
CAP = 32
PHI_BYTES = N * 768 * 2
WS_CNT = 0x1000000
WS_WPK = 0x1010000
WS_BKT = 0x1100000
WS_OVF = 0x2000000
NWG1 = 237
out = []
def e(s): out.append('    ' + s)
def L(s): out.append(s + ':')
def srd(s, lo, hi, nbytes):
    e(f's_mov_b32 s{s}, s{lo}'); e(f's_and_b32 s{s+1}, s{hi}, 0xffff')
    e(f's_mov_b32 s{s+2}, {nbytes}'); e(f's_mov_b32 s{s+3}, 0x20000')
def srd_off(s, lo, hi, off, nbytes):
    e(f's_add_u32 s{s}, s{lo}, {off}'); e(f's_addc_u32 s{s+1}, s{hi}, 0')
    e(f's_and_b32 s{s+1}, s{s+1}, 0xffff')
    e(f's_mov_b32 s{s+2}, {nbytes}'); e(f's_mov_b32 s{s+3}, 0x20000')

hdr = open('gather_scatter__molecular_angular_painn__graph.s.ref').read().split('\n')
for l in hdr:
    if l.startswith('; @launch') or l.startswith('; Override'): break
    out.append(l)
K1 = 'painn_prep_kernel'
K2 = 'gather_scatter__molecular_angular_painn__graph_kernel'
K2W = P['K2WAVES']
out.append(f'; @launch kernel={K1} grid=({NWG1},1,1) block=(256,1,1) lds=147456')
out.append(f'; @launch kernel={K2} grid=({N//K2W},1,1) block=({64*K2W},1,1) lds=0')
out.append('.amdgcn_target "amdgcn-amd-amdhsa--gfx950"')
out.append('.text')
def kstart(name):
    out.append(f'.globl {name}'); out.append('.p2align 8'); out.append(f'.type {name},@function'); L(name)

vm = []
def vmi(tag): vm.append(tag)
def vm_wait_for(tag):
    idx = max(i for i, t in enumerate(vm) if t == tag)
    n = len(vm) - 1 - idx
    assert n < 64, n
    e(f's_waitcnt vmcnt({n})')

kstart(K1)
def stamp(k):
    if not P['STAMP']: return
    e('s_memtime s[100:101]'); e('s_waitcnt lgkmcnt(0)')
    e(f's_cmp_eq_u32 s2, 100'); e(f's_cbranch_scc0 ST{k}'); e('s_cmp_eq_u32 s4, 0'); e(f's_cbranch_scc0 ST{k}')
    e('v_mov_b32 v24, s100'); e(f'v_mov_b32 v25, {4*k}')
    e(f'buffer_store_dword v24, v25, s[{S_DBG}:{S_DBG+3}], 0 offen'); L(f'ST{k}')
S_SV, S_W1, S_W2, S_PHI, S_POS, S_CNT, S_BKT, S_SRC, S_DST = 8, 12, 16, 20, 24, 28, 32, 36, 40
S_OVF, S_DBG, S_WR, S_WPK = 44, 48, 52, 56
e(f's_cmp_ge_u32 s2, {NWG1}'); e('s_cbranch_scc1 K1_end')
e('s_load_dwordx4 s[60:63], s[0:1], 0')
e('s_load_dwordx4 s[64:67], s[0:1], 16')
e('s_load_dwordx4 s[68:71], s[0:1], 32')
e('s_load_dwordx4 s[72:75], s[0:1], 48')
e('s_load_dwordx4 s[76:79], s[0:1], 72')
V_LANE, V_T0, V_T1, V_T2 = 1, 2, 3, 4
e(f'v_and_b32 v{V_LANE}, 63, v0')
e('v_lshrrev_b32 v2, 6, v0'); e('s_nop 0'); e('v_readfirstlane_b32 s4, v2')
e('s_mul_hi_u32 s5, s2, 0x55555556')
e('s_mul_i32 s6, s5, 3'); e('s_sub_u32 s6, s2, s6')
e('s_waitcnt lgkmcnt(0)')
e('s_load_dwordx2 s[80:81], s[68:69], 0')
e('s_waitcnt lgkmcnt(0)')
srd(S_SV, 60, 61, N * 2048); srd(S_POS, 62, 63, N * 6)
srd(S_SRC, 64, 65, E * 4); srd(S_DST, 66, 67, E * 4)
srd(S_W1, 70, 71, 256 * 512); srd(S_W2, 72, 73, 256 * 1536); srd(S_WR, 74, 75, 4 * 1536)
srd(S_DBG, 76, 77, 256); srd(S_PHI, 78, 79, PHI_BYTES)
srd_off(S_CNT, 78, 79, WS_CNT, (N + 16) * 4); srd_off(S_WPK, 78, 79, WS_WPK, 6144)
srd_off(S_BKT, 78, 79, WS_BKT, N * CAP * 32); srd_off(S_OVF, 78, 79, WS_OVF, E * 32)
stamp(1)
def rstamp(k):
    if not P['RST']: return
    e('s_memrealtime s[100:101]'); e('s_waitcnt lgkmcnt(0)')
    e('s_cmp_eq_u32 s4, 0'); e(f's_cbranch_scc0 RST{k}')
    e('v_mov_b32 v24, s100'); e(f's_lshl_b32 s100, s2, 3'); e(f's_add_u32 s100, s100, {0x8000000 + 4*k}'); e('v_mov_b32 v25, s100')
    e('global_store_dword v25, v24, s[78:79]'); L(f'RST{k}')
rstamp(0)
V_Z = 8
e('s_cmp_ge_u32 s2, 16'); e('s_cbranch_scc1 K1_nozero')
e('s_cmp_lg_u32 s4, 0'); e('s_cbranch_scc1 K1_nozero')
for i in range(4): e(f'v_mov_b32 v{V_Z+i}, 0')
e('s_mul_i32 s7, s2, 2560')
e(f'v_lshl_add_u32 v2, v{V_LANE}, 4, s7')
e(f'buffer_store_dwordx4 v[{V_Z}:{V_Z+3}], v2, s[{S_CNT}:{S_CNT+3}], 0 offen sc0 sc1')
e(f'buffer_store_dwordx4 v[{V_Z}:{V_Z+3}], v2, s[{S_CNT}:{S_CNT+3}], 0 offen offset:1024 sc0 sc1')
e(f'v_cmp_gt_u32 vcc, 32, v{V_LANE}'); e('s_and_saveexec_b64 s[82:83], vcc')
e(f'buffer_store_dwordx4 v[{V_Z}:{V_Z+3}], v2, s[{S_CNT}:{S_CNT+3}], 0 offen offset:2048 sc0 sc1')
e('s_waitcnt vmcnt(0)')
e(f'v_cmp_eq_u32 vcc, 0, v{V_LANE}'); e('s_and_b64 exec, exec, vcc')
e('v_mov_b32 v2, 0'); e('v_mov_b32 v3, 1')
e(f'buffer_atomic_add v3, v2, s[{S_DBG}:{S_DBG+3}], 0 offen sc1')
e('s_mov_b64 exec, s[82:83]')
L('K1_nozero')
e('s_cmp_lg_u32 s2, 16'); e('s_cbranch_scc1 K1_nopack')
e('s_cmp_ge_u32 s4, 3'); e('s_cbranch_scc1 K1_nopack')
e('s_lshl_b32 s7, s4, 9')
e(f'v_lshl_add_u32 v2, v{V_LANE}, 3, s7')
e('s_movk_i32 s82, 3072')
for j in range(4): e(f'buffer_load_dwordx2 v[{8+2*j}:{9+2*j}], v2, s[{S_WR}:{S_WR+3}], {"0" if j < 2 else "s82"} offen offset:{(j%2)*1536}')
e('s_mov_b32 s82, 0x05040100'); e('s_mov_b32 s83, 0x07060302')
e('s_lshl_b32 s7, s4, 11')
e(f'v_lshl_add_u32 v2, v{V_LANE}, 4, s7')
e('s_waitcnt vmcnt(0)')
for jp in range(2):
    a, b = 8 + 4 * jp, 10 + 4 * jp
    for c in range(4):
        e(f'v_perm_b32 v{16+c}, v{b+(c>>1)}, v{a+(c>>1)}, s{82+(c&1)}')
    e(f'buffer_store_dwordx4 v[16:19], v2, s[{S_WPK}:{S_WPK+3}], 0 offen offset:{jp*1024}')
    e('s_nop 1')
L('K1_nopack')
NEJ = 3
V_ES, V_ED = 26, 29
e('v_lshlrev_b32 v2, 2, v0')
e('s_lshl_b32 s7, s2, 10')
for j in range(NEJ):
    e(f's_add_u32 s82, s7, {j*NWG1*1024}'); e('v_add_u32 v3, s82, v2')
    e(f'buffer_load_dword v{V_ES+j}, v3, s[{S_SRC}:{S_SRC+3}], 0 offen'); vmi('idx')
    e(f'buffer_load_dword v{V_ED+j}, v3, s[{S_DST}:{S_DST+3}], 0 offen'); vmi('idx')
V_S = 64
e('s_lshl_b32 s7, s5, 7'); e('s_lshl_b32 s82, s4, 5'); e('s_add_u32 s7, s7, s82')
e(f'v_lshrrev_b32 v3, 5, v{V_LANE}')
e(f'v_and_b32 v4, 31, v{V_LANE}')
e('v_add_u32 v5, s7, v3')
e('s_lshl_b32 s83, s4, 14'); e('s_add_u32 s83, s83, 65536')
for i in range(16):
    e(f'v_add_u32 v2, {2*i}, v3'); e('v_and_b32 v2, 15, v2'); e('v_xor_b32 v2, v2, v4'); e('v_lshlrev_b32 v2, 4, v2')
    e(f'v_add_u32 v13, {2*i}, v5'); e('v_lshl_add_u32 v2, v13, 11, v2')
    e(f's_add_u32 m0, s83, {i*1024}'); e('s_nop 0')
    e(f'buffer_load_dwordx4 v2, s[{S_SV}:{S_SV+3}], 0 offen lds'); vmi('S')
V_PA, V_D1, V_D2 = 6, 7, 8
e(f'v_lshrrev_b32 v2, 4, v{V_LANE}'); e('v_and_b32 v2, 1, v2'); e('v_mul_u32_u24 v2, 6, v2')
e(f'v_and_b32 v13, 7, v{V_LANE}'); e('v_xor_b32 v2, v2, v13'); e('v_lshlrev_b32 v2, 4, v2')
e(f'v_lshrrev_b32 v13, 3, v{V_LANE}')
e(f'v_lshl_add_u32 v{V_D1}, v13, 9, v2')
e('v_mul_u32_u24 v13, 1536, v13'); e(f'v_add_u32 v{V_D2}, v13, v2')
e('s_lshl_b32 s84, s4, 13')
e('s_lshl_b32 s85, s4, 15')
e('s_mul_i32 s86, s4, 98304')
e('s_lshl_b32 s82, s6, 9'); e('s_add_u32 s86, s86, s82')
def dma_list(c):
    slot = c % 4; r = []
    for i in range(8):
        if c < 4:
            r.append([f's_add_u32 m0, s84, {slot*32768 + i*1024}', f's_add_u32 s87, s85, {i*8*512 + c*128}',
                      ('VM', f'dma{c}', f'buffer_load_dwordx4 v{V_D1}, s[{S_W1}:{S_W1+3}], s87 offen lds')])
        else:
            r.append([f's_add_u32 m0, s84, {slot*32768 + i*1024}', f's_add_u32 s87, s86, {i*8*1536 + (c-4)*128}',
                      ('VM', f'dma{c}', f'buffer_load_dwordx4 v{V_D2}, s[{S_W2}:{S_W2+3}], s87 offen lds')])
    return r
lg = []
def lg_wait_for(tag):
    idx = max(i for i, t in enumerate(lg) if t == tag)
    n = len(lg) - 1 - idx
    e(f's_waitcnt lgkmcnt({min(n, 15)})')
def emit_f(x):
    if isinstance(x, list):
        for y in x: emit_f(y)
    elif isinstance(x, tuple):
        if x[0] == 'VM': e(x[2]); vmi(x[1])
        elif x[0] == 'LG': e(x[2]); lg.append(x[1])
        elif x[0] == 'WLG': lg_wait_for(x[1])
        elif x[0] == 'WVM': vm_wait_for(x[1])
    else: e(x)
for c in range(2):
    for g in dma_list(c): emit_f(g)
e(f'v_lshrrev_b32 v2, 3, v{V_LANE}'); e('v_add_u32 v2, s7, v2')
e('s_mov_b32 s82, 1536'); e(f'v_mul_lo_u32 v{V_PA}, v2, s82')
e(f'v_and_b32 v2, 7, v{V_LANE}'); e(f'v_lshl_add_u32 v{V_PA}, v2, 4, v{V_PA}')
e('s_lshl_b32 s82, s6, 9'); e(f'v_add_u32 v{V_PA}, s82, v{V_PA}')
V_SW, V_SR = 32, 36
e('s_lshl_b32 s82, s4, 12'); e('s_add_u32 s82, s82, 131072')
e(f'v_and_b32 v2, 7, v4')
for q in range(4):
    e(f'v_lshl_add_u32 v13, v3, 2, {q}'); e('v_xor_b32 v13, v13, v2'); e('v_lshlrev_b32 v13, 4, v13')
    e(f'v_lshl_add_u32 v13, v4, 7, v13'); e(f'v_add_u32 v{V_SW+q}, s82, v13')
e(f'v_lshrrev_b32 v2, 3, v{V_LANE}'); e(f'v_and_b32 v13, 7, v{V_LANE}'); e('v_xor_b32 v13, v13, v2')
e('v_lshlrev_b32 v13, 4, v13'); e('v_lshl_add_u32 v13, v2, 7, v13'); e(f'v_add_u32 v{V_SR}, s82, v13')
V_SA = 37
e('v_and_b32 v2, 15, v4'); e('v_xor_b32 v2, v2, v3'); e(f'v_lshlrev_b32 v{V_SA}, 9, v4'); e(f'v_add_u32 v{V_SA}, s83, v{V_SA}')
V_A1 = [9, 10]; V_A2 = [11, 12]
e(f'v_lshrrev_b32 v16, 2, v{V_LANE}'); e('v_and_b32 v16, 3, v16')
e(f'v_and_b32 v4, 3, v{V_LANE}')
e(f'v_lshrrev_b32 v13, 4, v{V_LANE}'); e('v_and_b32 v13, 1, v13')
e('v_lshrrev_b32 v14, 1, v16'); e('v_mul_u32_u24 v14, 6, v14')
e('v_lshlrev_b32 v15, 7, v16')
for T in range(2):
    e('v_lshl_add_u32 v16, v13, 2, v4'); e('v_lshrrev_b32 v17, 1, v16'); e(f'v_add_u32 v17, {4*T}, v17')
    e('v_xor_b32 v17, v17, v14'); e('v_and_b32 v16, 1, v16'); e('v_lshlrev_b32 v16, 3, v16')
    e('v_lshl_add_u32 v16, v17, 4, v16'); e('v_add_u32 v16, v16, v15')
    e(f'v_lshl_add_u32 v{V_A1[T]}, v3, 10, v16')
    e('v_and_b32 v16, 1, v4'); e('v_lshl_add_u32 v16, v16, 2, v13'); e(f'v_add_u32 v16, {2*T}, v16')
    e('v_xor_b32 v16, v16, v14'); e('v_lshrrev_b32 v17, 1, v4'); e('v_lshlrev_b32 v17, 3, v17')
    e('v_lshl_add_u32 v16, v16, 4, v17'); e('v_add_u32 v16, v16, v15')
    e(f'v_lshl_add_u32 v{V_A2[T]}, v3, 9, v16')
for k in range(4): e(f'v_add_u32 v{20+k}, 0x10000, v{9+k}')
stamp(2)
V_PS, V_PD = 40, 46
vm_wait_for('idx')
for j in range(NEJ):
    for (vi, vp) in ((V_ES + j, V_PS + 2 * j), (V_ED + j, V_PD + 2 * j)):
        e(f'v_mul_u32_u24 v13, 6, v{vi}'); e('v_and_b32 v13, -4, v13')
        e(f'buffer_load_dwordx2 v[{vp}:{vp+1}], v13, s[{S_POS}:{S_POS+3}], 0 offen'); vmi('pos')
vm_wait_for('S')
for j in range(16):
    e(f'v_xor_b32 v13, {2*j}, v2'); e(f'v_lshl_add_u32 v13, v13, 4, v{V_SA}')
    e(f'ds_read_b128 v[{V_S+4*j}:{V_S+4*j+3}], v13')
e('s_waitcnt lgkmcnt(0)')
stamp(3)
e('s_lshl_b32 s88, s80, 16'); e('s_and_b32 s89, s80, 0xffff0000')
e('s_lshl_b32 s90, s81, 16'); e('s_and_b32 s91, s81, 0xffff0000')
e('s_mov_b32 s92, 0x3e22f983')
e('s_mov_b32 s93, 0x40490fdb')
e('s_mov_b32 s94, 0x3e4ccccd')
e('s_mov_b32 s95, 0x40a00000')
e('s_mov_b32 s96, 0x322bcc77')
e('s_mov_b32 s97, 0xbfb8aa3b')
REC = [40, 48, 56]
def geom(j):
    R = V_S + 8 * j; T = V_S + 32 + 10 * j; x = T + 9; f = []
    def rb(v): f.extend([f'v_cvt_pk_bf16_f32 v{v}, v{v}, v{v}', f'v_and_b32 v{v}, 0xffff0000, v{v}'])
    for (vi, vp, o) in ((V_ES + j, V_PS + 2 * j, T), (V_ED + j, V_PD + 2 * j, T + 3)):
        f.extend([f'v_and_b32 v{x}, 1, v{vi}', f'v_lshlrev_b32 v{x}, 4, v{x}', f'v_lshrrev_b64 v[{vp}:{vp+1}], v{x}, v[{vp}:{vp+1}]',
                  f'v_lshlrev_b32 v{o}, 16, v{vp}', f'v_and_b32 v{o+1}, 0xffff0000, v{vp}', f'v_lshlrev_b32 v{o+2}, 16, v{vp+1}'])
    for k in range(3): f.append(f'v_sub_f32 v{T+k}, v{T+k}, v{T+3+k}'); rb(T + k)
    for k in range(3): f.append(f'v_mul_f32 v{T+3+k}, v{T+k}, v{T+k}'); rb(T + 3 + k)
    f.extend([f'v_add_f32 v{T+3}, v{T+3}, v{T+4}', f'v_add_f32 v{T+3}, v{T+3}, v{T+5}']); rb(T + 3)
    f.append(f'v_add_f32 v{T+3}, s96, v{T+3}'); rb(T + 3)
    f.extend([f'v_sqrt_f32 v{T+3}, v{T+3}', 's_nop 0']); rb(T + 3)
    f.extend([f'v_rcp_f32 v{T+4}, v{T+3}', 's_nop 0'])
    for k in range(3): f.append(f'v_mul_f32 v{R+3+k}, v{T+k}, v{T+4}'); rb(R + 3 + k)
    f.append(f'v_mul_f32 v{T+5}, s93, v{T+3}'); rb(T + 5)
    f.append(f'v_mul_f32 v{T+5}, s94, v{T+5}'); rb(T + 5)
    f.extend([f'v_mul_f32 v{T+5}, s92, v{T+5}', f'v_fract_f32 v{T+5}, v{T+5}', f'v_cos_f32 v{T+5}, v{T+5}', 's_nop 0']); rb(T + 5)
    f.append(f'v_add_f32 v{T+5}, 1.0, v{T+5}'); rb(T + 5)
    f.append(f'v_mul_f32 v{T+5}, 0.5, v{T+5}'); rb(T + 5)
    for q in range(4):
        y = T + (0, 1, 2, 6)[q]
        f.append(f'v_mul_f32 v{y}, s{88+q}, v{T+3}'); rb(y)
        f.extend([f'v_mul_f32 v{y}, s92, v{y}', f'v_fract_f32 v{y}, v{y}', f'v_sin_f32 v{y}, v{y}', 's_nop 0']); rb(y)
        f.append(f'v_mul_f32 v{y}, v{y}, v{T+4}'); rb(y)
        f.append(f'v_mul_f32 v{y}, v{y}, v{T+5}')
    f.extend([f'v_cvt_pk_bf16_f32 v{R+1}, v{T}, v{T+1}', f'v_cvt_pk_bf16_f32 v{R+2}, v{T+2}, v{T+6}',
              f'v_mov_b32 v{R}, v{V_ES+j}', f'v_mov_b32 v{R+6}, v{V_ED+j}', f'v_mov_b32 v{R+7}, 0'])
    f.extend([f'v_lshlrev_b32 v{T+7}, 2, v{V_ED+j}', f'v_cmp_gt_f32 vcc, s95, v{T+3}'])
    if j == 2: f.append('s_and_b64 vcc, vcc, s[98:99]')
    f.extend([f'v_mov_b32 v{T+8}, 1', 's_nop 0', f'v_cndmask_b32 v{T+7}, v18, v{T+7}, vcc'])
    return f
def atom(j):
    T = V_S + 32 + 10 * j
    return [('VM', 'atom', f'buffer_atomic_add v{T+8}, v{T+7}, s[{S_CNT}:{S_CNT+3}], 0 offen sc0 sc1')]
e('v_mov_b32 v18, 0x7ffffff0')
e(f's_cmp_lt_u32 s2, {625 - 2*NWG1}'); e('s_cselect_b64 s[98:99], -1, 0')
V_H, V_ACC, V_AF, V_ET = 128, 192, 224, 240
NPF = 3
steps = [(c, Tt, j) for c in range(8) for Tt in range(2) for j in range(16)]
def aread(idx):
    c, Tt, j = steps[idx]
    slot = c % 4; r = V_AF + 4 * (idx % 4)
    base = V_A1[Tt] if c < 4 else V_A2[Tt]
    us = 512 if c < 4 else 1024
    offs = [slot * 32768 + j * 2048 + u * us for u in range(2)]
    if slot >= 2:
        base = {9: 20, 10: 21, 11: 22, 12: 23}[base]; offs = [o - 65536 for o in offs]
    return [('LG', f'a{idx}', f'ds_read_b64_tr_b16 v[{r}:{r+1}], v{base} offset:{offs[0]}'),
            ('LG', f'a{idx}', f'ds_read_b64_tr_b16 v[{r+2}:{r+3}], v{base} offset:{offs[1]}')]
def epilogue(tidx):
    c, Tt = tidx // 2, tidx % 2
    acc = V_ACC + 16 * (tidx % 2)
    f = []
    if c < 4:
        for p in range(8):
            x0, x1 = acc + 2 * p, acc + 2 * p + 1
            t0, t1 = V_ET + 2 * (p % 2), V_ET + 2 * (p % 2) + 1
            f += [f'v_mul_f32 v{t0}, s97, v{x0}', f'v_mul_f32 v{t1}, s97, v{x1}',
                  f'v_exp_f32 v{t0}, v{t0}', f'v_exp_f32 v{t1}, v{t1}',
                  f'v_add_f32 v{t0}, 1.0, v{t0}', f'v_add_f32 v{t1}, 1.0, v{t1}',
                  f'v_rcp_f32 v{t0}, v{t0}', f'v_rcp_f32 v{t1}, v{t1}',
                  f'v_mul_f32 v{t0}, v{x0}, v{t0}', f'v_mul_f32 v{t1}, v{x1}, v{t1}',
                  f'v_cvt_pk_bf16_f32 v{V_H + 8*tidx + p}, v{t0}, v{t1}']
    else:
        for q in range(2):
            b = V_ET + 8 * Tt + 4 * q
            for p in range(4): f.append(f'v_cvt_pk_bf16_f32 v{b+p}, v{acc + 8*q + 2*p}, v{acc + 8*q + 2*p + 1}')
            f.append(('LG', f'sw{c}', f'ds_write_b128 v{V_SW + 2*Tt + q}, v[{b}:{b+3}]'))
        if Tt == 1:
            for i in range(4): f.append(('LG', f'sr{c}_{i}', f'ds_read_b128 v[{V_ET+4*i}:{V_ET+4*i+3}], v{V_SR} offset:{1024*i}'))
            f += ['s_nop 0'] * 6
            for i in range(4):
                f.append([('WLG', f'sr{c}_{i}'), ('VM', 'st', f'buffer_store_dwordx4 v[{V_ET+4*i}:{V_ET+4*i+3}], v{V_PA}, s[{S_PHI}:{S_PHI+3}], s{60+i} offen offset:{(c-4)*128} {P["ST_PHI"]}')])
    return f
for i in range(4): e(f's_mov_b32 s{60+i}, {i*8*1536}')
pending = []; extra = []
for idx, (c, Tt, j) in enumerate(steps):
    tidx = 2 * c + Tt
    if Tt == 0 and j == 0:
        if c == 0: vm_wait_for('dma0')
        elif f'dma{c}' in vm: vm_wait_for(f'dma{c}')
        e('s_barrier')
        if c in (0, 1, 4, 7): stamp({0: 5, 1: 6, 4: 7, 7: 8}[c])
        for k in range(NPF): emit_f(aread(idx + k))
        if c == 0: extra += dma_list(2) + dma_list(3)
        if 1 <= c <= 4: extra += dma_list(c + 3)
        if c == 4 and not P['NOEDGE']:
            extra += [('WVM', 'pos')]
            for jj in range(NEJ): extra += geom(jj)
        if c == 3 and not P['NOEDGE']:
            e('v_mov_b32 v13, 0')
            e(f'buffer_load_dword v38, v13, s[{S_DBG}:{S_DBG+3}], 0 offen sc0 sc1'); vmi('poll')
        if c == 7 and not P['NOEDGE']:
            vm_wait_for('poll')
            L('K1_poll')
            e('v_readfirstlane_b32 s82, v38'); e('s_cmp_ge_u32 s82, 16'); e('s_cbranch_scc1 K1_polled')
            e('s_sleep 4'); e('v_mov_b32 v13, 0')
            e(f'buffer_load_dword v38, v13, s[{S_DBG}:{S_DBG+3}], 0 offen sc0 sc1')
            e('s_waitcnt vmcnt(0)'); e('s_branch K1_poll')
            L('K1_polled')
            assert not extra, len(extra)
            for jj in range(NEJ): emit_f(atom(jj))
    lg_wait_for(f'a{idx}')
    acc = V_ACC + 16 * (tidx % 2); a = V_AF + 4 * (idx % 4)
    bsrc = (V_S + 4 * j) if c < 4 else (V_H + 4 * j)
    cin = '0' if j == 0 else f'v[{acc}:{acc+15}]'
    e(f'v_mfma_f32_32x32x16_bf16 v[{acc}:{acc+15}], v[{a}:{a+3}], v[{bsrc}:{bsrc+3}], {cin}')
    nxt = idx + NPF
    if nxt < len(steps) and steps[nxt][0] == c: emit_f(aread(nxt))
    if j == 0 and tidx > 0 and tidx != 8:
        assert not pending
        pending = epilogue(tidx - 1)
    nf = P['FILL'] if c < 4 else P['FILL2']
    if j >= 2:
        n = nf if j < 15 else len(pending)
        k = min(n, len(pending))
        for _ in range(k): emit_f(pending.pop(0))
        nx = (1 if c < 4 else max(0, nf - k))
        for _ in range(min(nx, len(extra))): emit_f(extra.pop(0))
    if tidx == 7 and j == 15:
        e('s_nop 15')
        emit_f(epilogue(7)); e('s_nop 1')
assert not extra, len(extra)
e('s_nop 15')
emit_f(epilogue(15))
stamp(9)
if not P['NOEDGE']:
    vm_wait_for('atom')
    for j in range(NEJ):
        R = V_S + 8 * j; T = V_S + 32 + 10 * j
        e(f'v_cmp_gt_u32 vcc, v18, v{T+7}'); e(f'v_cmp_gt_u32 s[82:83], {CAP}, v{T+8}')
        e(f'v_lshlrev_b32 v2, 10, v{V_ED+j}'); e(f'v_lshl_add_u32 v2, v{T+8}, 5, v2')
        e('s_and_b64 s[84:85], vcc, s[82:83]'); e('s_andn2_b64 s[86:87], vcc, s[82:83]')
        e('v_cndmask_b32 v2, v18, v2, s[84:85]')
        e(f'buffer_store_dwordx4 v[{R}:{R+3}], v2, s[{S_BKT}:{S_BKT+3}], 0 offen')
        e(f'buffer_store_dwordx4 v[{R+4}:{R+7}], v2, s[{S_BKT}:{S_BKT+3}], 0 offen offset:16')
        e('s_cmp_eq_u64 s[86:87], 0'); e(f's_cbranch_scc1 K1_noovf{j}')
        e('s_mov_b64 exec, s[86:87]')
        e(f'v_mov_b32 v2, {N*4}'); e('v_mov_b32 v4, 1')
        e(f'buffer_atomic_add v4, v2, s[{S_CNT}:{S_CNT+3}], 0 offen sc0 sc1')
        e('s_waitcnt vmcnt(0)')
        e('v_lshlrev_b32 v2, 5, v4')
        e(f'buffer_store_dwordx4 v[{R}:{R+3}], v2, s[{S_OVF}:{S_OVF+3}], 0 offen')
        e(f'buffer_store_dwordx4 v[{R+4}:{R+7}], v2, s[{S_OVF}:{S_OVF+3}], 0 offen offset:16')
        e('s_mov_b64 exec, -1')
        L(f'K1_noovf{j}')
rstamp(1)
L('K1_end')
e('s_endpgm')

kstart(K2)
NRND = (DEPTH + 1) // 2
e(f's_cmp_ge_u32 s2, {N // K2W}'); e('s_cbranch_scc1 K2_end')
e('s_load_dwordx2 s[4:5], s[0:1], 0')
e('s_load_dwordx2 s[6:7], s[0:1], 64')
e('s_load_dwordx2 s[8:9], s[0:1], 80')
e('v_lshrrev_b32 v1, 6, v0'); e('v_and_b32 v0, 63, v0'); e('v_readfirstlane_b32 s3, v1')
e(f's_mul_i32 s2, s2, {K2W}'); e('s_add_u32 s2, s2, s3')
e('v_lshlrev_b32 v1, 3, v0')
e('v_lshlrev_b32 v2, 4, v0')
e('s_waitcnt lgkmcnt(0)')
e(f's_add_u32 s10, s8, {WS_CNT}'); e('s_addc_u32 s11, s9, 0')
e(f's_add_u32 s12, s8, {WS_BKT}'); e('s_addc_u32 s13, s9, 0')
e('s_lshl_b32 s14, s2, 2'); e('s_lshl_b32 s15, s2, 10')
e('s_load_dword s16, s[10:11], s14')
RS = 40
for i in range(0, DEPTH, 2):
    if i + 1 < DEPTH: e(f's_load_dwordx16 s[{RS+8*i}:{RS+8*i+15}], s[12:13], s15 offset:{32*i}')
    else: e(f's_load_dwordx8 s[{RS+8*i}:{RS+8*i+7}], s[12:13], s15 offset:{32*i}')
SV, OUT, PHI, WPK = 20, 24, 28, 32
srd(SV, 4, 5, N * 2048); srd(OUT, 6, 7, N * 2048); srd(PHI, 8, 9, PHI_BYTES); srd_off(WPK, 8, 9, WS_WPK, 6144)
e('s_lshl_b32 s17, s2, 11')
VW, VACC, VB, VT = 4, 28, 44, 44 + 12 * DEPTH
for g in range(4):
    e(f'buffer_load_dwordx2 v[{VB+2*g}:{VB+2*g+1}], v1, s[{SV}:{SV+3}], s17 offen offset:{512*g}')
e('s_waitcnt lgkmcnt(0)')
e('s_cmp_eq_u32 s16, 0'); e('s_cbranch_scc0 K2_some')
e('s_waitcnt vmcnt(0)')
for g in range(4):
    e(f'buffer_store_dwordx2 v[{VB+2*g}:{VB+2*g+1}], v1, s[{OUT}:{OUT+3}], s17 offen offset:{512*g} {P["ST_OUT"]}')
e('s_endpgm')
L('K2_some')
for q in range(6):
    e(f'buffer_load_dwordx4 v[{VW+4*q}:{VW+4*q+3}], v2, s[{WPK}:{WPK+3}], 0 offen offset:{1024*(q%4)}' if q < 4 else
      f'buffer_load_dwordx4 v[{VW+4*q}:{VW+4*q+3}], v2, s[{WPK}:{WPK+3}], s19 offen offset:{1024*(q%4)}')
    if q == 0: e('s_movk_i32 s19, 4096')
e('s_waitcnt vmcnt(6)')
for g in range(4):
    for p in range(2):
        e(f'v_lshlrev_b32 v{VACC+4*g+2*p}, 16, v{VB+2*g+p}'); e(f'v_and_b32 v{VACC+4*g+2*p+1}, 0xffff0000, v{VB+2*g+p}')
e(f's_min_u32 s18, s16, {CAP}')
def issue(s):
    r = RS + 8 * s; b = VB + 12 * s
    e(f's_mul_i32 s34, s{r}, 1536'); e(f's_lshl_b32 s35, s{r}, 11')
    for g in range(3): e(f'buffer_load_dwordx2 v[{b+2*g}:{b+2*g+1}], v1, s[{PHI}:{PHI+3}], s34 offen offset:{512*g}')
    for g in range(3): e(f'buffer_load_dwordx2 v[{b+6+2*g}:{b+6+2*g+1}], v1, s[{SV}:{SV+3}], s35 offen offset:{512*(g+1)}')
def process(r, b):
    t = VT
    def dots(g, o):
        for c in range(4): e(f'v_dot2_f32_bf16 v{o+c}, v{VW+8*g+c}, s{r+1}, 0')
        for c in range(4): e(f'v_dot2_f32_bf16 v{o+c}, v{VW+8*g+4+c}, s{r+2}, v{o+c}')
    def unpack(src, o):
        for p in range(2):
            e(f'v_lshlrev_b32 v{o+2*p}, 16, v{src+p}'); e(f'v_and_b32 v{o+2*p+1}, 0xffff0000, v{src+p}')
    dots(0, t); unpack(b, t + 4)
    for c in range(4): e(f'v_fmac_f32 v{VACC+c}, v{t+c}, v{t+4+c}')
    dots(2, t); unpack(b + 4, t + 4)
    for c in range(4): e(f'v_mul_f32 v{t+c}, v{t+c}, v{t+4+c}')
    for k in range(3):
        for c in range(4): e(f'v_fmac_f32 v{VACC+4+4*k+c}, s{r+3+k}, v{t+c}')
    dots(1, t); unpack(b + 2, t + 4)
    for c in range(4): e(f'v_mul_f32 v{t+c}, v{t+c}, v{t+4+c}')
    for k in range(3):
        unpack(b + 6 + 2 * k, t + 4)
        for c in range(4): e(f'v_fmac_f32 v{VACC+4+4*k+c}, v{t+c}, v{t+4+c}')
L('K2_round')
for m in range(1, DEPTH):
    e(f's_cmp_eq_u32 s18, {m}'); e(f's_cbranch_scc1 K2_I{m-1}')
for s in range(DEPTH - 1, -1, -1):
    L(f'K2_I{s}'); issue(s)
for m in range(1, DEPTH):
    e(f's_cmp_eq_u32 s18, {m}'); e(f's_cbranch_scc1 K2_B{m-1}')
for s in range(DEPTH - 1, -1, -1):
    L(f'K2_B{s}'); e(f's_waitcnt vmcnt({6*s})'); process(RS + 8 * s, VB + 12 * s)
e(f's_cmp_le_u32 s18, {DEPTH}'); e('s_cbranch_scc1 K2_bdone')
e(f's_sub_u32 s18, s18, {DEPTH}'); e(f's_add_u32 s15, s15, {32*DEPTH}')
for i in range(0, DEPTH, 2):
    if i + 1 < DEPTH: e(f's_load_dwordx16 s[{RS+8*i}:{RS+8*i+15}], s[12:13], s15 offset:{32*i}')
    else: e(f's_load_dwordx8 s[{RS+8*i}:{RS+8*i+7}], s[12:13], s15 offset:{32*i}')
e('s_waitcnt lgkmcnt(0)')
e('s_branch K2_round')
L('K2_bdone')
e(f's_cmp_le_u32 s16, {CAP}'); e('s_cbranch_scc1 K2_fin')
e(f's_load_dword s18, s[10:11], {N*4}')
e(f's_add_u32 s12, s8, {WS_OVF}'); e('s_addc_u32 s13, s9, 0')
e('s_mov_b32 s15, 0')
e('s_waitcnt lgkmcnt(0)')
e('s_lshl_b32 s18, s18, 5')
L('K2_ovf')
e('s_cmp_ge_u32 s15, s18'); e('s_cbranch_scc1 K2_fin')
e(f's_load_dwordx8 s[{RS}:{RS+7}], s[12:13], s15')
e('s_add_u32 s15, s15, 32')
e('s_waitcnt lgkmcnt(0)')
e(f's_cmp_eq_u32 s{RS+6}, s2'); e('s_cbranch_scc0 K2_ovf')
issue(0); e('s_waitcnt vmcnt(0)'); process(RS, VB)
e('s_branch K2_ovf')
L('K2_fin')
for g in range(4):
    for p in range(2):
        e(f'v_cvt_pk_bf16_f32 v{VT+2*(g%2)+p}, v{VACC+4*g+2*p}, v{VACC+4*g+2*p+1}')
    e(f'buffer_store_dwordx2 v[{VT+2*(g%2)}:{VT+2*(g%2)+1}], v1, s[{OUT}:{OUT+3}], s17 offen offset:{512*g} {P["ST_OUT"]}')
    if g == 1: e('s_nop 1')
L('K2_end')
e('s_endpgm')

out.append('.section .rodata,"a"')
def desc(name, vg, sg):
    out.append('.p2align 6'); out.append(f'.amdhsa_kernel {name}')
    out.append(f'  .amdhsa_next_free_vgpr {vg}'); out.append(f'  .amdhsa_next_free_sgpr {sg}')
    out.append(f'  .amdhsa_accum_offset {(vg+3)//4*4}')
    out.append('  .amdhsa_group_segment_fixed_size 0'); out.append('  .amdhsa_kernarg_size 88')
    out.append('  .amdhsa_user_sgpr_count 2'); out.append('  .amdhsa_user_sgpr_kernarg_segment_ptr 1')
    out.append('  .amdhsa_system_sgpr_workgroup_id_x 1'); out.append('.end_amdhsa_kernel')
desc(K1, 256, 102)
desc(K2, VT + 8, RS + 8 * DEPTH)
open(sys.argv[1], 'w').write('\n'.join(out) + '\n')
print('K2 vgprs', VT + 8, 'lines', len(out))
```

```python
import sys
P = dict(NOEDGE=0, NOGEMM=0, NOATOM=0, DUMMYT=0, STAMP=0, RST=0, DEPTH=4, ST_PHI='', ST_OUT='', FILL=7, FILL2=8, K2WAVES=4)
for a in sys.argv[2:]:
    k, v = a.split('=')
    P[k] = int(v) if v.lstrip('-').isdigit() else v
DEPTH = P['DEPTH']
N, E, D = 10000, 160000, 256
CAP = 32
PHI_BYTES = N * 768 * 2
WS_CNT = 0x1000000
WS_WPK = 0x1010000
WS_BKT = 0x1100000
WS_OVF = 0x2000000
NWG1 = 237
out = []
def e(s): out.append('    ' + s)
def L(s): out.append(s + ':')
def srd(s, lo, hi, nbytes):
    e(f's_mov_b32 s{s}, s{lo}'); e(f's_and_b32 s{s+1}, s{hi}, 0xffff')
    e(f's_mov_b32 s{s+2}, {nbytes}'); e(f's_mov_b32 s{s+3}, 0x20000')
def srd_off(s, lo, hi, off, nbytes):
    e(f's_add_u32 s{s}, s{lo}, {off}'); e(f's_addc_u32 s{s+1}, s{hi}, 0')
    e(f's_and_b32 s{s+1}, s{s+1}, 0xffff')
    e(f's_mov_b32 s{s+2}, {nbytes}'); e(f's_mov_b32 s{s+3}, 0x20000')

hdr = open('gather_scatter__molecular_angular_painn__graph.s.ref').read().split('\n')
for l in hdr:
    if l.startswith('; @launch') or l.startswith('; Override'): break
    out.append(l)
K1 = 'painn_prep_kernel'
K2 = 'gather_scatter__molecular_angular_painn__graph_kernel'
K2W = P['K2WAVES']
out.append(f'; @launch kernel={K1} grid=({NWG1},1,1) block=(512,1,1) lds=163840')
out.append(f'; @launch kernel={K2} grid=({N//K2W},1,1) block=({64*K2W},1,1) lds=0')
out.append('.amdgcn_target "amdgcn-amd-amdhsa--gfx950"')
out.append('.text')
def kstart(name):
    out.append(f'.globl {name}'); out.append('.p2align 8'); out.append(f'.type {name},@function'); L(name)

vm = []
def vmi(tag): vm.append(tag)
def vm_wait_for(tag):
    idx = max(i for i, t in enumerate(vm) if t == tag)
    n = len(vm) - 1 - idx
    assert n < 64, n
    e(f's_waitcnt vmcnt({n})')

kstart(K1)
def stamp(k):
    if not P['STAMP']: return
    e('s_memtime s[100:101]'); e('s_waitcnt lgkmcnt(0)')
    e(f's_cmp_eq_u32 s2, 100'); e(f's_cbranch_scc0 ST{k}'); e('s_cmp_eq_u32 s4, 0'); e(f's_cbranch_scc0 ST{k}')
    e('v_mov_b32 v24, s100'); e(f'v_mov_b32 v25, {4*k}')
    e(f'buffer_store_dword v24, v25, s[{S_DBG}:{S_DBG+3}], 0 offen'); L(f'ST{k}')
S_SV, S_W1, S_W2, S_PHI, S_POS, S_CNT, S_BKT, S_SRC, S_DST = 8, 12, 16, 20, 24, 28, 32, 36, 40
S_OVF, S_DBG, S_WR, S_WPK = 44, 48, 52, 56
e(f's_cmp_ge_u32 s2, {NWG1}'); e('s_cbranch_scc1 K1_end')
e('s_load_dwordx4 s[60:63], s[0:1], 0')
e('s_load_dwordx4 s[64:67], s[0:1], 16')
e('s_load_dwordx4 s[68:71], s[0:1], 32')
e('s_load_dwordx4 s[72:75], s[0:1], 48')
e('s_load_dwordx4 s[76:79], s[0:1], 72')
V_LANE, V_T0, V_T1, V_T2 = 1, 2, 3, 4
e(f'v_and_b32 v{V_LANE}, 63, v0')
e('v_lshrrev_b32 v2, 6, v0'); e('s_nop 0'); e('v_readfirstlane_b32 s4, v2')
e('s_mul_hi_u32 s5, s2, 0x55555556')
e('s_mul_i32 s6, s5, 3'); e('s_sub_u32 s6, s2, s6')
e('s_waitcnt lgkmcnt(0)')
e('s_load_dwordx2 s[80:81], s[68:69], 0')
e('s_waitcnt lgkmcnt(0)')
srd(S_SV, 60, 61, N * 2048); srd(S_POS, 62, 63, N * 6)
srd(S_SRC, 64, 65, E * 4); srd(S_DST, 66, 67, E * 4)
srd(S_W1, 70, 71, 256 * 512); srd(S_W2, 72, 73, 256 * 1536); srd(S_WR, 74, 75, 4 * 1536)
srd(S_DBG, 76, 77, 256); srd(S_PHI, 78, 79, PHI_BYTES)
srd_off(S_CNT, 78, 79, WS_CNT, (N + 16) * 4); srd_off(S_WPK, 78, 79, WS_WPK, 6144)
srd_off(S_BKT, 78, 79, WS_BKT, N * CAP * 32); srd_off(S_OVF, 78, 79, WS_OVF, E * 32)
stamp(1)
def rstamp(k):
    if not P['RST']: return
    e('s_memrealtime s[100:101]'); e('s_waitcnt lgkmcnt(0)')
    e('s_cmp_eq_u32 s4, 0'); e(f's_cbranch_scc0 RST{k}')
    e('v_mov_b32 v24, s100'); e(f's_lshl_b32 s100, s2, 3'); e(f's_add_u32 s100, s100, {0x8000000 + 4*k}'); e('v_mov_b32 v25, s100')
    e('global_store_dword v25, v24, s[78:79]'); L(f'RST{k}')
rstamp(0)
V_Z = 8
e('s_cmp_ge_u32 s2, 16'); e('s_cbranch_scc1 K1_nozero')
e('s_cmp_lg_u32 s4, 0'); e('s_cbranch_scc1 K1_nozero')
for i in range(4): e(f'v_mov_b32 v{V_Z+i}, 0')
e('s_mul_i32 s7, s2, 2560')
e(f'v_lshl_add_u32 v2, v{V_LANE}, 4, s7')
e(f'buffer_store_dwordx4 v[{V_Z}:{V_Z+3}], v2, s[{S_CNT}:{S_CNT+3}], 0 offen sc0 sc1')
e(f'buffer_store_dwordx4 v[{V_Z}:{V_Z+3}], v2, s[{S_CNT}:{S_CNT+3}], 0 offen offset:1024 sc0 sc1')
e(f'v_cmp_gt_u32 vcc, 32, v{V_LANE}'); e('s_and_saveexec_b64 s[82:83], vcc')
e(f'buffer_store_dwordx4 v[{V_Z}:{V_Z+3}], v2, s[{S_CNT}:{S_CNT+3}], 0 offen offset:2048 sc0 sc1')
e('s_waitcnt vmcnt(0)')
e(f'v_cmp_eq_u32 vcc, 0, v{V_LANE}'); e('s_and_b64 exec, exec, vcc')
e('v_mov_b32 v2, 0'); e('v_mov_b32 v3, 1')
e(f'buffer_atomic_add v3, v2, s[{S_DBG}:{S_DBG+3}], 0 offen sc1')
e('s_mov_b64 exec, s[82:83]')
L('K1_nozero')
e('s_cmp_lg_u32 s2, 16'); e('s_cbranch_scc1 K1_nopack')
e('s_cmp_ge_u32 s4, 3'); e('s_cbranch_scc1 K1_nopack')
e('s_lshl_b32 s7, s4, 9')
e(f'v_lshl_add_u32 v2, v{V_LANE}, 3, s7')
e('s_movk_i32 s82, 3072')
for j in range(4): e(f'buffer_load_dwordx2 v[{8+2*j}:{9+2*j}], v2, s[{S_WR}:{S_WR+3}], {"0" if j < 2 else "s82"} offen offset:{(j%2)*1536}')
e('s_mov_b32 s82, 0x05040100'); e('s_mov_b32 s83, 0x07060302')
e('s_lshl_b32 s7, s4, 11')
e(f'v_lshl_add_u32 v2, v{V_LANE}, 4, s7')
e('s_waitcnt vmcnt(0)')
for jp in range(2):
    a_, b_ = 8 + 4 * jp, 10 + 4 * jp
    for c in range(4):
        e(f'v_perm_b32 v{16+c}, v{b_+(c>>1)}, v{a_+(c>>1)}, s{82+(c&1)}')
    e(f'buffer_store_dwordx4 v[16:19], v2, s[{S_WPK}:{S_WPK+3}], 0 offen offset:{jp*1024}')
    e('s_nop 1')
L('K1_nopack')
e('s_and_b32 s56, s4, 3'); e('s_lshr_b32 s57, s4, 2')
V_PA, V_D1, V_D2 = 6, 7, 8
e(f'v_lshrrev_b32 v2, 4, v{V_LANE}'); e('v_and_b32 v2, 1, v2'); e('v_mul_u32_u24 v2, 6, v2')
e(f'v_and_b32 v13, 7, v{V_LANE}'); e('v_xor_b32 v2, v2, v13'); e('v_lshlrev_b32 v2, 4, v2')
e(f'v_lshrrev_b32 v13, 3, v{V_LANE}')
e(f'v_lshl_add_u32 v{V_D1}, v13, 9, v2')
e('v_mul_u32_u24 v13, 1536, v13'); e(f'v_add_u32 v{V_D2}, v13, v2')
e('s_lshl_b32 s84, s4, 12')
e('s_lshl_b32 s85, s4, 14')
e('s_mul_i32 s86, s4, 49152')
e('s_lshl_b32 s82, s6, 9'); e('s_add_u32 s86, s86, s82')
def dma_list(c):
    slot = c % 4; r = []
    for i in range(4):
        if c < 4:
            r.append([f's_add_u32 m0, s84, {slot*32768 + i*1024}', f's_add_u32 s87, s85, {i*8*512 + c*128}',
                      ('VM', f'dma{c}', f'buffer_load_dwordx4 v{V_D1}, s[{S_W1}:{S_W1+3}], s87 offen lds')])
        else:
            r.append([f's_add_u32 m0, s84, {slot*32768 + i*1024}', f's_add_u32 s87, s86, {i*8*1536 + (c-4)*128}',
                      ('VM', f'dma{c}', f'buffer_load_dwordx4 v{V_D2}, s[{S_W2}:{S_W2+3}], s87 offen lds')])
    return r
lg = []
def lg_wait_for(tag):
    idx = max(i for i, t in enumerate(lg) if t == tag)
    n = len(lg) - 1 - idx
    e(f's_waitcnt lgkmcnt({min(n, 15)})')
def emit_f(x):
    if isinstance(x, list):
        for y in x: emit_f(y)
    elif isinstance(x, tuple):
        if x[0] == 'VM': e(x[2]); vmi(x[1])
        elif x[0] == 'LG': e(x[2]); lg.append(x[1])
        elif x[0] == 'WLG': lg_wait_for(x[1])
        elif x[0] == 'WVM': vm_wait_for(x[1])
    else: e(x)
for g in dma_list(0): emit_f(g)
V_S = 64
e('s_lshl_b32 s7, s5, 7'); e('s_lshl_b32 s82, s56, 5'); e('s_add_u32 s7, s7, s82')
e(f'v_lshrrev_b32 v3, 5, v{V_LANE}')
e(f'v_and_b32 v4, 31, v{V_LANE}')
e('s_lshl_b32 s82, s57, 4'); e('v_add_u32 v5, s82, v3')
e('s_lshl_b32 s83, s56, 14'); e('s_add_u32 s83, s83, 65536')
e('s_lshl_b32 s82, s57, 13'); e('s_add_u32 s59, s83, s82')
for i in range(8):
    e(f'v_add_u32 v13, {2*i}, v5'); e('v_and_b32 v2, 15, v13'); e('v_xor_b32 v2, v2, v4'); e('v_lshlrev_b32 v2, 4, v2')
    e('v_add_u32 v13, s7, v13'); e(f's_add_u32 m0, s59, {i*1024}'); e('v_lshl_add_u32 v2, v13, 11, v2')
    e(f'buffer_load_dwordx4 v2, s[{S_SV}:{S_SV+3}], 0 offen lds'); vmi('S')
for g in dma_list(1): emit_f(g)
e(f'v_lshrrev_b32 v2, 2, v{V_LANE}'); e('v_add_u32 v2, s7, v2')
e('s_mov_b32 s82, 1536'); e(f'v_mul_lo_u32 v{V_PA}, v2, s82')
e(f'v_and_b32 v2, 3, v{V_LANE}'); e(f'v_lshl_add_u32 v{V_PA}, v2, 4, v{V_PA}')
e('s_lshl_b32 s82, s6, 9'); e('s_lshl_b32 s59, s57, 6'); e('s_add_u32 s82, s82, s59'); e(f'v_add_u32 v{V_PA}, s82, v{V_PA}')
V_SW, V_SR, V_SA, V_XW, V_XR = 32, 34, 35, 36, 37
e('s_lshl_b32 s82, s4, 11'); e('s_add_u32 s82, s82, 131072')
e('v_lshrrev_b32 v2, 1, v4'); e('v_and_b32 v2, 3, v2')
for q in range(2):
    e(f'v_lshl_add_u32 v13, v3, 1, {q}'); e('v_xor_b32 v13, v13, v2'); e('v_lshlrev_b32 v13, 4, v13')
    e(f'v_lshl_add_u32 v13, v4, 6, v13'); e(f'v_add_u32 v{V_SW+q}, s82, v13')
e(f'v_lshrrev_b32 v2, 3, v{V_LANE}'); e('v_and_b32 v2, 3, v2'); e(f'v_and_b32 v13, 3, v{V_LANE}'); e('v_xor_b32 v13, v13, v2')
e('v_lshlrev_b32 v13, 4, v13'); e(f'v_lshrrev_b32 v2, 2, v{V_LANE}'); e('v_lshl_add_u32 v13, v2, 6, v13'); e(f'v_add_u32 v{V_SR}, s82, v13')
e(f'v_lshlrev_b32 v2, 4, v{V_LANE}'); e('s_lshl_b32 s82, s4, 12'); e('s_add_u32 s82, s82, 131072'); e(f'v_add_u32 v{V_XW}, s82, v2')
e('s_xor_b32 s82, s4, 4'); e('s_lshl_b32 s82, s82, 12'); e('s_add_u32 s82, s82, 131072'); e(f'v_add_u32 v{V_XR}, s82, v2')
e('v_and_b32 v2, 15, v4'); e('v_xor_b32 v19, v2, v3'); e(f'v_lshlrev_b32 v{V_SA}, 9, v4'); e(f'v_add_u32 v{V_SA}, s83, v{V_SA}')
V_A1, V_A2 = 9, 10
e(f'v_lshrrev_b32 v16, 2, v{V_LANE}'); e('v_and_b32 v16, 3, v16')
e(f'v_and_b32 v4, 3, v{V_LANE}')
e(f'v_lshrrev_b32 v13, 4, v{V_LANE}'); e('v_and_b32 v13, 1, v13')
e('v_lshrrev_b32 v14, 1, v16'); e('v_mul_u32_u24 v14, 6, v14')
e('v_lshlrev_b32 v15, 7, v16')
e('s_lshl_b32 s82, s57, 2')
e('v_lshl_add_u32 v16, v13, 2, v4'); e('v_lshrrev_b32 v17, 1, v16'); e('v_add_u32 v17, s82, v17')
e('v_xor_b32 v17, v17, v14'); e('v_and_b32 v16, 1, v16'); e('v_lshlrev_b32 v16, 3, v16')
e('v_lshl_add_u32 v16, v17, 4, v16'); e('v_add_u32 v16, v16, v15')
e(f'v_lshl_add_u32 v{V_A1}, v3, 10, v16')
e('v_and_b32 v16, 1, v4'); e('v_lshl_add_u32 v16, v16, 1, v13'); e('v_add_u32 v16, s82, v16')
e('v_xor_b32 v16, v16, v14'); e('v_lshrrev_b32 v17, 1, v4'); e('v_lshlrev_b32 v17, 3, v17')
e('v_lshl_add_u32 v16, v16, 4, v17'); e('v_add_u32 v16, v16, v15')
e(f'v_lshl_add_u32 v{V_A2}, v3, 9, v16')
e('s_lshl_b32 s82, s57, 12'); e('s_sub_u32 s59, 4096, s82')
e(f'v_add_u32 v11, s59, v{V_A2}'); e(f'v_add_u32 v{V_A2}, s82, v{V_A2}')
e(f'v_add_u32 v20, 0x10000, v{V_A1}'); e(f'v_add_u32 v21, 0x10000, v{V_A2}'); e('v_add_u32 v22, 0x10000, v11')
stamp(2)
vm_wait_for('S'); e('s_barrier')
for j in range(16):
    e(f'v_xor_b32 v13, {2*j}, v19'); e(f'v_lshl_add_u32 v13, v13, 4, v{V_SA}')
    e(f'ds_read_b128 v[{V_S+4*j}:{V_S+4*j+3}], v13')
NEJ = 2
V_ES, V_ED, V_EI = 26, 28, 30
e('v_lshlrev_b32 v2, 2, v0'); e('s_lshl_b32 s59, s2, 11')
for j in range(NEJ):
    e(f's_add_u32 s82, s59, {j*NWG1*2048}'); e(f'v_add_u32 v{V_EI+j}, s82, v2')
    e(f'buffer_load_dword v{V_ES+j}, v{V_EI+j}, s[{S_SRC}:{S_SRC+3}], 0 offen'); vmi('idx')
    e(f'buffer_load_dword v{V_ED+j}, v{V_EI+j}, s[{S_DST}:{S_DST+3}], 0 offen'); vmi('idx')
e('s_waitcnt lgkmcnt(0)')
stamp(3)
e('s_lshl_b32 s88, s80, 16'); e('s_and_b32 s89, s80, 0xffff0000')
e('s_lshl_b32 s90, s81, 16'); e('s_and_b32 s91, s81, 0xffff0000')
e('s_mov_b32 s92, 0x3e22f983'); e('s_mov_b32 s93, 0x40490fdb'); e('s_mov_b32 s94, 0x3e4ccccd')
e('s_mov_b32 s95, 0x40a00000'); e('s_mov_b32 s96, 0x322bcc77'); e('s_mov_b32 s97, 0xbfb8aa3b')
V_PS, V_PD = 40, 44
def posload():
    f = [('WVM', 'idx')]
    for j in range(NEJ):
        for (vi, vp) in ((V_ES + j, V_PS + 2 * j), (V_ED + j, V_PD + 2 * j)):
            f.append([f'v_mul_u32_u24 v13, 6, v{vi}', 'v_and_b32 v13, -4, v13',
                      ('VM', 'pos', f'buffer_load_dwordx2 v[{vp}:{vp+1}], v13, s[{S_POS}:{S_POS+3}], 0 offen')])
    return f
def geom(j):
    R = V_S + 8 * j; T = V_S + 32 + 10 * j; x = T + 9; f = []
    def rb(v): f.extend([f'v_cvt_pk_bf16_f32 v{v}, v{v}, v{v}', f'v_and_b32 v{v}, 0xffff0000, v{v}'])
    for (vi, vp, o) in ((V_ES + j, V_PS + 2 * j, T), (V_ED + j, V_PD + 2 * j, T + 3)):
        f.extend([f'v_and_b32 v{x}, 1, v{vi}', f'v_lshlrev_b32 v{x}, 4, v{x}', f'v_lshrrev_b64 v[{vp}:{vp+1}], v{x}, v[{vp}:{vp+1}]',
                  f'v_lshlrev_b32 v{o}, 16, v{vp}', f'v_and_b32 v{o+1}, 0xffff0000, v{vp}', f'v_lshlrev_b32 v{o+2}, 16, v{vp+1}'])
    for k in range(3): f.append(f'v_sub_f32 v{T+k}, v{T+k}, v{T+3+k}'); rb(T + k)
    for k in range(3): f.append(f'v_mul_f32 v{T+3+k}, v{T+k}, v{T+k}'); rb(T + 3 + k)
    f.extend([f'v_add_f32 v{T+3}, v{T+3}, v{T+4}', f'v_add_f32 v{T+3}, v{T+3}, v{T+5}']); rb(T + 3)
    f.append(f'v_add_f32 v{T+3}, s96, v{T+3}'); rb(T + 3)
    f.extend([f'v_sqrt_f32 v{T+3}, v{T+3}', 's_nop 0']); rb(T + 3)
    f.extend([f'v_rcp_f32 v{T+4}, v{T+3}', 's_nop 0'])
    for k in range(3): f.append(f'v_mul_f32 v{R+3+k}, v{T+k}, v{T+4}'); rb(R + 3 + k)
    f.append(f'v_mul_f32 v{T+5}, s93, v{T+3}'); rb(T + 5)
    f.append(f'v_mul_f32 v{T+5}, s94, v{T+5}'); rb(T + 5)
    f.extend([f'v_mul_f32 v{T+5}, s92, v{T+5}', f'v_fract_f32 v{T+5}, v{T+5}', f'v_cos_f32 v{T+5}, v{T+5}', 's_nop 0']); rb(T + 5)
    f.append(f'v_add_f32 v{T+5}, 1.0, v{T+5}'); rb(T + 5)
    f.append(f'v_mul_f32 v{T+5}, 0.5, v{T+5}'); rb(T + 5)
    for q in range(4):
        y = T + (0, 1, 2, 6)[q]
        f.append(f'v_mul_f32 v{y}, s{88+q}, v{T+3}'); rb(y)
        f.extend([f'v_mul_f32 v{y}, s92, v{y}', f'v_fract_f32 v{y}, v{y}', f'v_sin_f32 v{y}, v{y}', 's_nop 0']); rb(y)
        f.append(f'v_mul_f32 v{y}, v{y}, v{T+4}'); rb(y)
        f.append(f'v_mul_f32 v{y}, v{y}, v{T+5}')
    f.extend([f'v_cvt_pk_bf16_f32 v{R+1}, v{T}, v{T+1}', f'v_cvt_pk_bf16_f32 v{R+2}, v{T+2}, v{T+6}',
              f'v_mov_b32 v{R}, v{V_ES+j}', f'v_mov_b32 v{R+6}, v{V_ED+j}', f'v_mov_b32 v{R+7}, 0'])
    f.extend([f'v_lshlrev_b32 v{T+7}, 2, v{V_ED+j}', f'v_cmp_gt_f32 vcc, s95, v{T+3}', f'v_cmp_gt_u32 s[98:99], s38, v{V_EI+j}',
              f'v_mov_b32 v{T+8}, 1', 's_nop 0', 's_and_b64 vcc, vcc, s[98:99]', f'v_cndmask_b32 v{T+7}, v18, v{T+7}, vcc'])
    return f
def atom(j):
    T = V_S + 32 + 10 * j
    return [('VM', 'atom', f'buffer_atomic_add v{T+8}, v{T+7}, s[{S_CNT}:{S_CNT+3}], 0 offen sc0 sc1')]
e('v_mov_b32 v18, 0x7ffffff0')
V_H, V_ACC, V_AF, V_ET = 128, 192, 224, 240
NPF = 3
steps = [(c, j) for c in range(8) for j in range(16)]
def aread(idx):
    c, j = steps[idx]
    slot = c % 4; r = V_AF + 4 * (idx % 4)
    base = V_A1 if c < 4 else V_A2
    us = 512 if c < 4 else 1024
    offs = [slot * 32768 + j * 2048 + u * us for u in range(2)]
    if c >= 4 and (j & 2): base = 11; offs = [o - 4096 for o in offs]
    if slot >= 2:
        base = {V_A1: 20, V_A2: 21, 11: 22}[base]; offs = [o - 65536 for o in offs]
    return [('LG', f'a{idx}', f'ds_read_b64_tr_b16 v[{r}:{r+1}], v{base} offset:{offs[0]}'),
            ('LG', f'a{idx}', f'ds_read_b64_tr_b16 v[{r+2}:{r+3}], v{base} offset:{offs[1]}')]
def xread(c):
    return [('LG', f'xr{c}', f'ds_read_b128 v[{V_X+8*(c%2)}:{V_X+8*(c%2)+3}], v{V_XR} offset:{(c%2)*2048}'),
            ('LG', f'xr{c}', f'ds_read_b128 v[{V_X+8*(c%2)+4}:{V_X+8*(c%2)+7}], v{V_XR} offset:{(c%2)*2048+1024}')]
V_X, V_O = 48, 128
def epilogue(c):
    acc = V_ACC + 16 * (c % 2)
    f = []
    if c < 4:
        o = V_H + 16 * c
        for p in range(8):
            x0, x1 = acc + 2 * p, acc + 2 * p + 1
            t0, t1 = V_ET + 2 * (p % 2), V_ET + 2 * (p % 2) + 1
            f += [f'v_mul_f32 v{t0}, s97, v{x0}', f'v_mul_f32 v{t1}, s97, v{x1}',
                  f'v_exp_f32 v{t0}, v{t0}', f'v_exp_f32 v{t1}, v{t1}',
                  f'v_add_f32 v{t0}, 1.0, v{t0}', f'v_add_f32 v{t1}, 1.0, v{t1}',
                  f'v_rcp_f32 v{t0}, v{t0}', f'v_rcp_f32 v{t1}, v{t1}',
                  f'v_mul_f32 v{t0}, v{x0}, v{t0}', f'v_mul_f32 v{t1}, v{x1}, v{t1}',
                  f'v_cvt_pk_bf16_f32 v{o + p}, v{t0}, v{t1}']
        f += [('LG', f'xw{c}', f'ds_write_b128 v{V_XW}, v[{o}:{o+3}] offset:{(c%2)*2048}'),
              ('LG', f'xw{c}', f'ds_write_b128 v{V_XW}, v[{o+4}:{o+7}] offset:{(c%2)*2048+1024}')]
    else:
        for q in range(2):
            b = V_ET + 4 * q
            for p in range(4): f.append(f'v_cvt_pk_bf16_f32 v{b+p}, v{acc + 8*q + 2*p}, v{acc + 8*q + 2*p + 1}')
            f.append(('LG', f'sw{c}', f'ds_write_b128 v{V_SW + q}, v[{b}:{b+3}]'))
        for i in range(2): f.append(('LG', f'sr{c}_{i}', f'ds_read_b128 v[{V_ET+8+4*i}:{V_ET+8+4*i+3}], v{V_SR} offset:{1024*i}'))
        f += ['s_nop 0'] * 3
        for i in range(2):
            f.append([('WLG', f'sr{c}_{i}'), ('VM', 'st', f'buffer_store_dwordx4 v[{V_ET+8+4*i}:{V_ET+8+4*i+3}], v{V_PA}, s[{S_PHI}:{S_PHI+3}], s{60+i} offen offset:{(c-4)*128} {P["ST_PHI"]}')])
    return f
def xread_into(c):
    o = V_H + 16 * c + 8
    return [('LG', f'xr{c}', f'ds_read_b128 v[{o}:{o+3}], v{V_XR} offset:{(c%2)*2048}'),
            ('LG', f'xr{c}', f'ds_read_b128 v[{o+4}:{o+7}], v{V_XR} offset:{(c%2)*2048+1024}')]
for i in range(2): e(f's_mov_b32 s{60+i}, {i*16*1536}')
pending = []; extra = []
for idx, (c, j) in enumerate(steps):
    if j == 0:
        if f'dma{c}' in vm: vm_wait_for(f'dma{c}')
        if c in (2, 3, 4) : lg_wait_for(f'xw{ {2:0, 3:1, 4:3}[c] }')
        e('s_barrier')
        if c in (0, 1, 4, 7): stamp({0: 5, 1: 6, 4: 7, 7: 8}[c])
        be = 1 if (c >= 4 and P['DUMMYT']) else 0
        for k in range(NPF): emit_f(aread(idx + k))
        if c == 2: emit_f(xread_into(0))
        if c == 3: emit_f(xread_into(1))
        if c == 4: emit_f(xread_into(2) + xread_into(3))
        if c == 0: extra += dma_list(2) + dma_list(3)
        if 1 <= c <= 4: extra += dma_list(c + 3)
        if c == 1 and not P['NOEDGE']: extra += posload()
        if c == 3 and not P['NOEDGE']:
            e('v_mov_b32 v13, 0')
            e(f'buffer_load_dword v38, v13, s[{S_DBG}:{S_DBG+3}], 0 offen sc0 sc1'); vmi('poll')
        if c == 4 and not P['NOEDGE']:
            extra += [('WVM', 'pos')]
            for jj in range(NEJ): extra += geom(jj)
        if c == 7 and not P['NOEDGE']:
            vm_wait_for('poll')
            L('K1_poll')
            e('v_readfirstlane_b32 s82, v38'); e('s_cmp_ge_u32 s82, 16'); e('s_cbranch_scc1 K1_polled')
            e('s_sleep 4'); e('v_mov_b32 v13, 0')
            e(f'buffer_load_dword v38, v13, s[{S_DBG}:{S_DBG+3}], 0 offen sc0 sc1')
            e('s_waitcnt vmcnt(0)'); e('s_branch K1_poll')
            L('K1_polled')
            assert not extra, len(extra)
            for jj in range(NEJ): emit_f(atom(jj))
    lg_wait_for(f'a{idx}')
    if c == 4 and j == 8: lg_wait_for('xr3')
    acc = V_ACC + 16 * (c % 2); a = V_AF + 4 * (idx % 4)
    if c < 4: bsrc = V_S + 4 * j
    else:
        t = j >> 1
        bsrc = f'HS{t}_{j&1}'
    cin = '0' if j == 0 else f'v[{acc}:{acc+15}]'
    if c < 4:
        e(f'v_mfma_f32_32x32x16_bf16 v[{acc}:{acc+15}], v[{a}:{a+3}], v[{bsrc}:{bsrc+3}], {cin}')
    else:
        b = V_H + 8 * t + 4 * (j & 1)
        e(f'v_mfma_f32_32x32x16_bf16 v[{acc}:{acc+15}], v[{a}:{a+3}], v[{b}:{b+3}], {cin}')
    nxt = idx + NPF
    if nxt < len(steps) and steps[nxt][0] == c: emit_f(aread(nxt))
    if j == 0 and c > 0 and c != 4:
        assert not pending
        pending = epilogue(c - 1)
    nf = P['FILL'] if c < 4 else P['FILL2']
    if j >= 2:
        n = nf if j < 15 else len(pending)
        k = min(n, len(pending))
        for _ in range(k): emit_f(pending.pop(0))
        nx = (1 if c < 4 else max(0, nf - k))
        for _ in range(min(nx, len(extra))): emit_f(extra.pop(0))
    if c == 3 and j == 15:
        e('s_barrier'); e('s_nop 15')
        emit_f(epilogue(3))
assert not extra, len(extra)
e('s_nop 15')
emit_f(epilogue(7))
stamp(9)
if not P['NOEDGE']:
    vm_wait_for('atom')
    for j in range(NEJ):
        R = V_S + 8 * j; T = V_S + 32 + 10 * j
        e(f'v_cmp_gt_u32 vcc, v18, v{T+7}'); e(f'v_cmp_gt_u32 s[82:83], {CAP}, v{T+8}')
        e(f'v_lshlrev_b32 v2, 10, v{V_ED+j}'); e(f'v_lshl_add_u32 v2, v{T+8}, 5, v2')
        e('s_and_b64 s[84:85], vcc, s[82:83]'); e('s_andn2_b64 s[86:87], vcc, s[82:83]')
        e('v_cndmask_b32 v2, v18, v2, s[84:85]')
        e(f'buffer_store_dwordx4 v[{R}:{R+3}], v2, s[{S_BKT}:{S_BKT+3}], 0 offen')
        e(f'buffer_store_dwordx4 v[{R+4}:{R+7}], v2, s[{S_BKT}:{S_BKT+3}], 0 offen offset:16')
        e('s_cmp_eq_u64 s[86:87], 0'); e(f's_cbranch_scc1 K1_noovf{j}')
        e('s_mov_b64 exec, s[86:87]')
        e(f'v_mov_b32 v2, {N*4}'); e('v_mov_b32 v4, 1')
        e(f'buffer_atomic_add v4, v2, s[{S_CNT}:{S_CNT+3}], 0 offen sc0 sc1')
        e('s_waitcnt vmcnt(0)')
        e('v_lshlrev_b32 v2, 5, v4')
        e(f'buffer_store_dwordx4 v[{R}:{R+3}], v2, s[{S_OVF}:{S_OVF+3}], 0 offen')
        e(f'buffer_store_dwordx4 v[{R+4}:{R+7}], v2, s[{S_OVF}:{S_OVF+3}], 0 offen offset:16')
        e('s_mov_b64 exec, -1')
        L(f'K1_noovf{j}')
rstamp(1)
L('K1_end')
e('s_endpgm')

kstart(K2)
NRND = (DEPTH + 1) // 2
e(f's_cmp_ge_u32 s2, {N // K2W}'); e('s_cbranch_scc1 K2_end')
e('s_load_dwordx2 s[4:5], s[0:1], 0')
e('s_load_dwordx2 s[6:7], s[0:1], 64')
e('s_load_dwordx2 s[8:9], s[0:1], 80')
e('v_lshrrev_b32 v1, 6, v0'); e('v_and_b32 v0, 63, v0'); e('v_readfirstlane_b32 s3, v1')
e(f's_mul_i32 s2, s2, {K2W}'); e('s_add_u32 s2, s2, s3')
e('v_lshlrev_b32 v1, 3, v0')
e('v_lshlrev_b32 v2, 4, v0')
e('s_waitcnt lgkmcnt(0)')
e(f's_add_u32 s10, s8, {WS_CNT}'); e('s_addc_u32 s11, s9, 0')
e(f's_add_u32 s12, s8, {WS_BKT}'); e('s_addc_u32 s13, s9, 0')
e('s_lshl_b32 s14, s2, 2'); e('s_lshl_b32 s15, s2, 10')
e('s_load_dword s16, s[10:11], s14')
RS = 40
for i in range(0, DEPTH, 2):
    if i + 1 < DEPTH: e(f's_load_dwordx16 s[{RS+8*i}:{RS+8*i+15}], s[12:13], s15 offset:{32*i}')
    else: e(f's_load_dwordx8 s[{RS+8*i}:{RS+8*i+7}], s[12:13], s15 offset:{32*i}')
SV, OUT, PHI, WPK = 20, 24, 28, 32
srd(SV, 4, 5, N * 2048); srd(OUT, 6, 7, N * 2048); srd(PHI, 8, 9, PHI_BYTES); srd_off(WPK, 8, 9, WS_WPK, 6144)
e('s_lshl_b32 s17, s2, 11')
VW, VACC, VB, VT = 4, 28, 44, 44 + 12 * DEPTH
for g in range(4):
    e(f'buffer_load_dwordx2 v[{VB+2*g}:{VB+2*g+1}], v1, s[{SV}:{SV+3}], s17 offen offset:{512*g}')
e('s_waitcnt lgkmcnt(0)')
e('s_cmp_eq_u32 s16, 0'); e('s_cbranch_scc0 K2_some')
e('s_waitcnt vmcnt(0)')
for g in range(4):
    e(f'buffer_store_dwordx2 v[{VB+2*g}:{VB+2*g+1}], v1, s[{OUT}:{OUT+3}], s17 offen offset:{512*g} {P["ST_OUT"]}')
e('s_endpgm')
L('K2_some')
for q in range(6):
    e(f'buffer_load_dwordx4 v[{VW+4*q}:{VW+4*q+3}], v2, s[{WPK}:{WPK+3}], 0 offen offset:{1024*(q%4)}' if q < 4 else
      f'buffer_load_dwordx4 v[{VW+4*q}:{VW+4*q+3}], v2, s[{WPK}:{WPK+3}], s19 offen offset:{1024*(q%4)}')
    if q == 0: e('s_movk_i32 s19, 4096')
e('s_waitcnt vmcnt(6)')
for g in range(4):
    for p in range(2):
        e(f'v_lshlrev_b32 v{VACC+4*g+2*p}, 16, v{VB+2*g+p}'); e(f'v_and_b32 v{VACC+4*g+2*p+1}, 0xffff0000, v{VB+2*g+p}')
e(f's_min_u32 s18, s16, {CAP}')
def issue(s):
    r = RS + 8 * s; b = VB + 12 * s
    e(f's_mul_i32 s34, s{r}, 1536'); e(f's_lshl_b32 s35, s{r}, 11')
    for g in range(3): e(f'buffer_load_dwordx2 v[{b+2*g}:{b+2*g+1}], v1, s[{PHI}:{PHI+3}], s34 offen offset:{512*g}')
    for g in range(3): e(f'buffer_load_dwordx2 v[{b+6+2*g}:{b+6+2*g+1}], v1, s[{SV}:{SV+3}], s35 offen offset:{512*(g+1)}')
def process(r, b):
    t = VT
    def dots(g, o):
        for c in range(4): e(f'v_dot2_f32_bf16 v{o+c}, v{VW+8*g+c}, s{r+1}, 0')
        for c in range(4): e(f'v_dot2_f32_bf16 v{o+c}, v{VW+8*g+4+c}, s{r+2}, v{o+c}')
    def unpack(src, o):
        for p in range(2):
            e(f'v_lshlrev_b32 v{o+2*p}, 16, v{src+p}'); e(f'v_and_b32 v{o+2*p+1}, 0xffff0000, v{src+p}')
    dots(0, t); unpack(b, t + 4)
    for c in range(4): e(f'v_fmac_f32 v{VACC+c}, v{t+c}, v{t+4+c}')
    dots(2, t); unpack(b + 4, t + 4)
    for c in range(4): e(f'v_mul_f32 v{t+c}, v{t+c}, v{t+4+c}')
    for k in range(3):
        for c in range(4): e(f'v_fmac_f32 v{VACC+4+4*k+c}, s{r+3+k}, v{t+c}')
    dots(1, t); unpack(b + 2, t + 4)
    for c in range(4): e(f'v_mul_f32 v{t+c}, v{t+c}, v{t+4+c}')
    for k in range(3):
        unpack(b + 6 + 2 * k, t + 4)
        for c in range(4): e(f'v_fmac_f32 v{VACC+4+4*k+c}, v{t+c}, v{t+4+c}')
L('K2_round')
for m in range(1, DEPTH):
    e(f's_cmp_eq_u32 s18, {m}'); e(f's_cbranch_scc1 K2_I{m-1}')
for s in range(DEPTH - 1, -1, -1):
    L(f'K2_I{s}'); issue(s)
for m in range(1, DEPTH):
    e(f's_cmp_eq_u32 s18, {m}'); e(f's_cbranch_scc1 K2_B{m-1}')
for s in range(DEPTH - 1, -1, -1):
    L(f'K2_B{s}'); e(f's_waitcnt vmcnt({6*s})'); process(RS + 8 * s, VB + 12 * s)
e(f's_cmp_le_u32 s18, {DEPTH}'); e('s_cbranch_scc1 K2_bdone')
e(f's_sub_u32 s18, s18, {DEPTH}'); e(f's_add_u32 s15, s15, {32*DEPTH}')
for i in range(0, DEPTH, 2):
    if i + 1 < DEPTH: e(f's_load_dwordx16 s[{RS+8*i}:{RS+8*i+15}], s[12:13], s15 offset:{32*i}')
    else: e(f's_load_dwordx8 s[{RS+8*i}:{RS+8*i+7}], s[12:13], s15 offset:{32*i}')
e('s_waitcnt lgkmcnt(0)')
e('s_branch K2_round')
L('K2_bdone')
e(f's_cmp_le_u32 s16, {CAP}'); e('s_cbranch_scc1 K2_fin')
e(f's_load_dword s18, s[10:11], {N*4}')
e(f's_add_u32 s12, s8, {WS_OVF}'); e('s_addc_u32 s13, s9, 0')
e('s_mov_b32 s15, 0')
e('s_waitcnt lgkmcnt(0)')
e('s_lshl_b32 s18, s18, 5')
L('K2_ovf')
e('s_cmp_ge_u32 s15, s18'); e('s_cbranch_scc1 K2_fin')
e(f's_load_dwordx8 s[{RS}:{RS+7}], s[12:13], s15')
e('s_add_u32 s15, s15, 32')
e('s_waitcnt lgkmcnt(0)')
e(f's_cmp_eq_u32 s{RS+6}, s2'); e('s_cbranch_scc0 K2_ovf')
issue(0); e('s_waitcnt vmcnt(0)'); process(RS, VB)
e('s_branch K2_ovf')
L('K2_fin')
for g in range(4):
    for p in range(2):
        e(f'v_cvt_pk_bf16_f32 v{VT+2*(g%2)+p}, v{VACC+4*g+2*p}, v{VACC+4*g+2*p+1}')
    e(f'buffer_store_dwordx2 v[{VT+2*(g%2)}:{VT+2*(g%2)+1}], v1, s[{OUT}:{OUT+3}], s17 offen offset:{512*g} {P["ST_OUT"]}')
    if g == 1: e('s_nop 1')
L('K2_end')
e('s_endpgm')

out.append('.section .rodata,"a"')
def desc(name, vg, sg):
    out.append('.p2align 6'); out.append(f'.amdhsa_kernel {name}')
    out.append(f'  .amdhsa_next_free_vgpr {vg}'); out.append(f'  .amdhsa_next_free_sgpr {sg}')
    out.append(f'  .amdhsa_accum_offset {(vg+3)//4*4}')
    out.append('  .amdhsa_group_segment_fixed_size 0'); out.append('  .amdhsa_kernarg_size 88')
    out.append('  .amdhsa_user_sgpr_count 2'); out.append('  .amdhsa_user_sgpr_kernarg_segment_ptr 1')
    out.append('  .amdhsa_system_sgpr_workgroup_id_x 1'); out.append('.end_amdhsa_kernel')
desc(K1, 256, 102)
desc(K2, VT + 8, RS + 8 * DEPTH)
open(sys.argv[1], 'w').write('\n'.join(out) + '\n')
print('K2 vgprs', VT + 8, 'lines', len(out))
```

```python
import sys
P = dict(XMAP=1, PK=1, NOEDGE=0, NOGEMM=0, NOATOM=0, DUMMYT=0, ROT=3, ROTSH=3, STAMP=0, RST=0, DEPTH=4, ST_PHI='', ST_OUT='', FILL=7, FILL2=8, K2WAVES=4)
for a in sys.argv[2:]:
    k, v = a.split('=')
    P[k] = int(v) if v.lstrip('-').isdigit() else v
DEPTH = P['DEPTH']
N, E, D = 10000, 160000, 256
CAP = 32
PHI_BYTES = N * 768 * 2
WS_CNT = 0x1000000
WS_WPK = 0x1010000
WS_BKT = 0x1100000
WS_OVF = 0x2000000
NWG1 = 237
GRID1 = 240 if P['XMAP'] else NWG1
out = []
def e(s): out.append('    ' + s)
def L(s): out.append(s + ':')
def srd(s, lo, hi, nbytes):
    e(f's_mov_b32 s{s}, s{lo}'); e(f's_and_b32 s{s+1}, s{hi}, 0xffff')
    e(f's_mov_b32 s{s+2}, {nbytes}'); e(f's_mov_b32 s{s+3}, 0x20000')
def srd_off(s, lo, hi, off, nbytes):
    e(f's_add_u32 s{s}, s{lo}, {off}'); e(f's_addc_u32 s{s+1}, s{hi}, 0')
    e(f's_and_b32 s{s+1}, s{s+1}, 0xffff')
    e(f's_mov_b32 s{s+2}, {nbytes}'); e(f's_mov_b32 s{s+3}, 0x20000')

hdr = open('gather_scatter__molecular_angular_painn__graph.s.ref').read().split('\n')
for l in hdr:
    if l.startswith('; @launch') or l.startswith('; Override'): break
    out.append(l)
K1 = 'painn_prep_kernel'
K2 = 'gather_scatter__molecular_angular_painn__graph_kernel'
K2W = P['K2WAVES']
out.append(f'; @launch kernel={K1} grid=({GRID1},1,1) block=(512,1,1) lds=163840')
out.append(f'; @launch kernel={K2} grid=({N//K2W},1,1) block=({64*K2W},1,1) lds=0')
out.append('.amdgcn_target "amdgcn-amd-amdhsa--gfx950"')
out.append('.text')
def kstart(name):
    out.append(f'.globl {name}'); out.append('.p2align 8'); out.append(f'.type {name},@function'); L(name)

vm = []
def vmi(tag): vm.append(tag)
def vm_wait_for(tag):
    idx = max(i for i, t in enumerate(vm) if t == tag)
    n = len(vm) - 1 - idx
    assert n < 64, n
    e(f's_waitcnt vmcnt({n})')

kstart(K1)
def stamp(k):
    if not P['STAMP']: return
    e('s_memtime s[100:101]'); e('s_waitcnt lgkmcnt(0)')
    e(f's_cmp_eq_u32 s2, 100'); e(f's_cbranch_scc0 ST{k}'); e('s_cmp_eq_u32 s4, 0'); e(f's_cbranch_scc0 ST{k}')
    e('v_mov_b32 v24, s100'); e(f'v_mov_b32 v25, {4*k}')
    e(f'buffer_store_dword v24, v25, s[{S_DBG}:{S_DBG+3}], 0 offen'); L(f'ST{k}')
S_SV, S_W1, S_W2, S_PHI, S_POS, S_CNT, S_BKT, S_SRC, S_DST = 8, 12, 16, 20, 24, 28, 32, 36, 40
S_OVF, S_DBG, S_WR, S_WPK = 44, 48, 52, 56
if P['XMAP']:
    e('s_cmp_ge_u32 s2, 240'); e('s_cbranch_scc1 K1_end')
    e('s_and_b32 s7, s2, 7'); e('s_lshr_b32 s6, s2, 3'); e('s_mul_hi_u32 s5, s6, 0x55555556')
    e('s_mul_i32 s3, s5, 3'); e('s_sub_u32 s6, s6, s3'); e('s_lshl_b32 s5, s5, 3'); e('s_add_u32 s5, s5, s7')
    e('s_cmp_ge_u32 s5, 79'); e('s_cbranch_scc1 K1_end')
    e('s_mul_i32 s2, s5, 3'); e('s_add_u32 s2, s2, s6')
else:
    e(f's_cmp_ge_u32 s2, {NWG1}'); e('s_cbranch_scc1 K1_end')
e('s_load_dwordx4 s[60:63], s[0:1], 0')
e('s_load_dwordx4 s[64:67], s[0:1], 16')
e('s_load_dwordx4 s[68:71], s[0:1], 32')
e('s_load_dwordx4 s[72:75], s[0:1], 48')
e('s_load_dwordx4 s[76:79], s[0:1], 72')
V_LANE, V_T0, V_T1, V_T2 = 1, 2, 3, 4
e(f'v_and_b32 v{V_LANE}, 63, v0')
e('v_lshrrev_b32 v2, 6, v0'); e('s_nop 0'); e('v_readfirstlane_b32 s4, v2')
e('s_mul_hi_u32 s5, s2, 0x55555556')
e('s_mul_i32 s6, s5, 3'); e('s_sub_u32 s6, s2, s6')
e('s_waitcnt lgkmcnt(0)')
e('s_load_dwordx2 s[80:81], s[68:69], 0')
srd(S_SV, 60, 61, N * 2048); srd(S_POS, 62, 63, N * 6)
srd(S_SRC, 64, 65, E * 4); srd(S_DST, 66, 67, E * 4)
srd(S_W1, 70, 71, 256 * 512); srd(S_W2, 72, 73, 256 * 1536); srd(S_WR, 74, 75, 4 * 1536)
srd(S_DBG, 76, 77, 256); srd(S_PHI, 78, 79, PHI_BYTES)
srd_off(S_CNT, 78, 79, WS_CNT, (N + 16) * 4); srd_off(S_WPK, 78, 79, WS_WPK, 6144)
srd_off(S_BKT, 78, 79, WS_BKT, N * CAP * 32); srd_off(S_OVF, 78, 79, WS_OVF, E * 32)
stamp(1)
def rstamp(k):
    if not P['RST']: return
    e('s_memrealtime s[100:101]'); e('s_waitcnt lgkmcnt(0)')
    e('s_cmp_eq_u32 s4, 0'); e(f's_cbranch_scc0 RST{k}')
    e('v_mov_b32 v24, s100'); e(f's_lshl_b32 s100, s2, 3'); e(f's_add_u32 s100, s100, {0x8000000 + 4*k}'); e('v_mov_b32 v25, s100')
    e('global_store_dword v25, v24, s[78:79]'); L(f'RST{k}')
rstamp(0)
V_Z = 8
e('s_cmp_ge_u32 s2, 16'); e('s_cbranch_scc1 K1_nozero')
e('s_cmp_lg_u32 s4, 0'); e('s_cbranch_scc1 K1_nozero')
for i in range(4): e(f'v_mov_b32 v{V_Z+i}, 0')
e('s_mul_i32 s7, s2, 2560')
e(f'v_lshl_add_u32 v2, v{V_LANE}, 4, s7')
e(f'buffer_store_dwordx4 v[{V_Z}:{V_Z+3}], v2, s[{S_CNT}:{S_CNT+3}], 0 offen sc0 sc1')
e(f'buffer_store_dwordx4 v[{V_Z}:{V_Z+3}], v2, s[{S_CNT}:{S_CNT+3}], 0 offen offset:1024 sc0 sc1')
e(f'v_cmp_gt_u32 vcc, 32, v{V_LANE}'); e('s_and_saveexec_b64 s[82:83], vcc')
e(f'buffer_store_dwordx4 v[{V_Z}:{V_Z+3}], v2, s[{S_CNT}:{S_CNT+3}], 0 offen offset:2048 sc0 sc1')
e('s_mov_b64 exec, s[82:83]')
L('K1_nozero')
e('s_cmp_lg_u32 s2, 16'); e('s_cbranch_scc1 K1_nopack')
e('s_cmp_ge_u32 s4, 3'); e('s_cbranch_scc1 K1_nopack')
e('s_lshl_b32 s7, s4, 9')
e(f'v_lshl_add_u32 v2, v{V_LANE}, 3, s7')
e('s_movk_i32 s82, 3072')
PKR = [48, 50, 60, 62]
for j in range(4): e(f'buffer_load_dwordx2 v[{PKR[j]}:{PKR[j]+1}], v2, s[{S_WR}:{S_WR+3}], {"0" if j < 2 else "s82"} offen offset:{(j%2)*1536}')
L('K1_nopack')
e('s_and_b32 s56, s4, 3'); e('s_lshr_b32 s57, s4, 2')
e(f's_lshr_b32 s58, s2, {P["ROTSH"]}'); e(f's_and_b32 s58, s58, {P["ROT"]}')
for c_ in range(4):
    e(f's_add_u32 s{64+c_}, s58, {c_}'); e(f's_and_b32 s{64+c_}, s{64+c_}, 3'); e(f's_lshl_b32 s{64+c_}, s{64+c_}, 7')
V_PA, V_D1, V_D2 = 6, 7, 8
e(f'v_lshrrev_b32 v2, 4, v{V_LANE}'); e('v_and_b32 v2, 1, v2'); e('v_mul_u32_u24 v2, 6, v2')
e(f'v_and_b32 v13, 7, v{V_LANE}'); e('v_xor_b32 v2, v2, v13'); e('v_lshlrev_b32 v2, 4, v2')
e(f'v_lshrrev_b32 v13, 3, v{V_LANE}')
e(f'v_lshl_add_u32 v{V_D1}, v13, 9, v2')
e('v_mul_u32_u24 v13, 1536, v13'); e(f'v_add_u32 v{V_D2}, v13, v2')
e('s_lshl_b32 s84, s4, 12')
e('s_lshl_b32 s85, s4, 14')
e('s_mul_i32 s86, s4, 49152')
e('s_lshl_b32 s82, s6, 9'); e('s_add_u32 s86, s86, s82')
def dma_list(c):
    slot = c % 4; r = []
    for i in range(4):
        if c < 4:
            r.append([f's_add_u32 m0, s84, {slot*32768 + i*1024}', f's_add_u32 s87, s85, {i*8*512}', f's_add_u32 s87, s87, s{64+c}',
                      ('VM', f'dma{c}', f'buffer_load_dwordx4 v{V_D1}, s[{S_W1}:{S_W1+3}], s87 offen lds')])
        else:
            r.append([f's_add_u32 m0, s84, {slot*32768 + i*1024}', f's_add_u32 s87, s86, {i*8*1536}', f's_add_u32 s87, s87, s{64+c-4}',
                      ('VM', f'dma{c}', f'buffer_load_dwordx4 v{V_D2}, s[{S_W2}:{S_W2+3}], s87 offen lds')])
    return r
lg = []
def lg_wait_for(tag):
    idx = max(i for i, t in enumerate(lg) if t == tag)
    n = len(lg) - 1 - idx
    e(f's_waitcnt lgkmcnt({min(n, 15)})')
def emit_f(x):
    if isinstance(x, list):
        for y in x: emit_f(y)
    elif isinstance(x, tuple):
        if x[0] == 'VM': e(x[2]); vmi(x[1])
        elif x[0] == 'LG': e(x[2]); lg.append(x[1])
        elif x[0] == 'WLG': lg_wait_for(x[1])
        elif x[0] == 'WVM': vm_wait_for(x[1])
    else: e(x)
for g in dma_list(0): emit_f(g)
V_S = 64
e('s_lshl_b32 s7, s5, 7'); e('s_lshl_b32 s82, s56, 5'); e('s_add_u32 s7, s7, s82')
e(f'v_lshrrev_b32 v3, 5, v{V_LANE}')
e(f'v_and_b32 v4, 31, v{V_LANE}')
e('s_lshl_b32 s82, s57, 4'); e('v_add_u32 v5, s82, v3')
e('s_lshl_b32 s83, s56, 14'); e('s_add_u32 s83, s83, 65536')
e('s_lshl_b32 s82, s57, 13'); e('s_add_u32 s59, s83, s82')
for i in range(8):
    e(f'v_add_u32 v13, {2*i}, v5'); e('v_and_b32 v2, 15, v13'); e('v_xor_b32 v2, v2, v4'); e('v_lshlrev_b32 v2, 4, v2')
    e('v_add_u32 v13, s7, v13'); e(f's_add_u32 m0, s59, {i*1024}'); e('v_lshl_add_u32 v2, v13, 11, v2')
    e(f'buffer_load_dwordx4 v2, s[{S_SV}:{S_SV+3}], 0 offen lds'); vmi('S')
for g in dma_list(1): emit_f(g)
e(f'v_lshrrev_b32 v2, 2, v{V_LANE}'); e('v_add_u32 v2, s7, v2')
e('s_mov_b32 s82, 1536'); e(f'v_mul_lo_u32 v{V_PA}, v2, s82')
e(f'v_and_b32 v2, 3, v{V_LANE}'); e(f'v_lshl_add_u32 v{V_PA}, v2, 4, v{V_PA}')
e('s_lshl_b32 s82, s6, 9'); e('s_lshl_b32 s59, s57, 6'); e('s_add_u32 s82, s82, s59'); e(f'v_add_u32 v{V_PA}, s82, v{V_PA}')
V_SW, V_SR, V_SA, V_XW, V_XR = 32, 34, 35, 36, 37
e('s_lshl_b32 s82, s4, 11'); e('s_add_u32 s82, s82, 131072')
e('v_lshrrev_b32 v2, 1, v4'); e('v_and_b32 v2, 3, v2')
for q in range(2):
    e(f'v_lshl_add_u32 v13, v3, 1, {q}'); e('v_xor_b32 v13, v13, v2'); e('v_lshlrev_b32 v13, 4, v13')
    e(f'v_lshl_add_u32 v13, v4, 6, v13'); e(f'v_add_u32 v{V_SW+q}, s82, v13')
e(f'v_lshrrev_b32 v2, 3, v{V_LANE}'); e('v_and_b32 v2, 3, v2'); e(f'v_and_b32 v13, 3, v{V_LANE}'); e('v_xor_b32 v13, v13, v2')
e('v_lshlrev_b32 v13, 4, v13'); e(f'v_lshrrev_b32 v2, 2, v{V_LANE}'); e('v_lshl_add_u32 v13, v2, 6, v13'); e(f'v_add_u32 v{V_SR}, s82, v13')
e(f'v_lshlrev_b32 v2, 4, v{V_LANE}'); e('s_lshl_b32 s82, s4, 12'); e('s_add_u32 s82, s82, 131072'); e(f'v_add_u32 v{V_XW}, s82, v2')
e('s_xor_b32 s82, s4, 4'); e('s_lshl_b32 s82, s82, 12'); e('s_add_u32 s82, s82, 131072'); e(f'v_add_u32 v{V_XR}, s82, v2')
e('v_and_b32 v2, 15, v4'); e('v_xor_b32 v19, v2, v3'); e(f'v_lshlrev_b32 v{V_SA}, 9, v4'); e(f'v_add_u32 v{V_SA}, s83, v{V_SA}')
V_A1, V_A2 = 9, 10
e(f'v_lshrrev_b32 v16, 2, v{V_LANE}'); e('v_and_b32 v16, 3, v16')
e(f'v_and_b32 v4, 3, v{V_LANE}')
e(f'v_lshrrev_b32 v13, 4, v{V_LANE}'); e('v_and_b32 v13, 1, v13')
e('v_lshrrev_b32 v14, 1, v16'); e('v_mul_u32_u24 v14, 6, v14')
e('v_lshlrev_b32 v15, 7, v16')
e('s_lshl_b32 s82, s57, 2')
e('v_lshl_add_u32 v16, v13, 2, v4'); e('v_lshrrev_b32 v17, 1, v16'); e('v_add_u32 v17, s82, v17')
e('v_xor_b32 v17, v17, v14'); e('v_and_b32 v16, 1, v16'); e('v_lshlrev_b32 v16, 3, v16')
e('v_lshl_add_u32 v16, v17, 4, v16'); e('v_add_u32 v16, v16, v15')
e(f'v_lshl_add_u32 v{V_A1}, v3, 10, v16')
e('v_and_b32 v16, 1, v4'); e('v_lshl_add_u32 v16, v16, 1, v13'); e('v_add_u32 v16, s82, v16')
e('v_xor_b32 v16, v16, v14'); e('v_lshrrev_b32 v17, 1, v4'); e('v_lshlrev_b32 v17, 3, v17')
e('v_lshl_add_u32 v16, v16, 4, v17'); e('v_add_u32 v16, v16, v15')
e(f'v_lshl_add_u32 v{V_A2}, v3, 9, v16')
e('s_lshl_b32 s82, s57, 12'); e('s_sub_u32 s59, 4096, s82')
VA2 = {}
rr = 52
for p_ in range(4):
    for m_ in range(2):
        e(f's_lshl_b32 s68, s{64+p_}, 6'); e(f's_add_u32 s68, s68, {"s59" if m_ else "s82"}')
        e(f'v_add_u32 v{rr}, s68, v{V_A2}'); VA2[(p_, m_)] = rr; rr += 1
e(f'v_add_u32 v20, 0x10000, v{V_A1}')
stamp(2)
vm_wait_for('S')
e('s_cmp_ge_u32 s2, 16'); e('s_cbranch_scc1 K1_nosig'); e('s_cmp_lg_u32 s4, 0'); e('s_cbranch_scc1 K1_nosig')
e('s_waitcnt vmcnt(0)')
e(f'v_cmp_eq_u32 vcc, 0, v{V_LANE}'); e('s_and_saveexec_b64 s[82:83], vcc')
e('v_mov_b32 v2, 0'); e('v_mov_b32 v13, 1')
e(f'buffer_atomic_add v13, v2, s[{S_DBG}:{S_DBG+3}], 0 offen sc1')
e('s_mov_b64 exec, s[82:83]')
L('K1_nosig')
e('s_barrier')
for j in range(16):
    e(f'v_xor_b32 v13, {2*j}, v19'); e(f'v_lshl_add_u32 v13, v13, 4, v{V_SA}')
    e(f'ds_read_b128 v[{V_S+4*j}:{V_S+4*j+3}], v13')
NEJ = 2
V_ES, V_ED, V_EI = 26, 28, 30
e('v_lshlrev_b32 v2, 2, v0'); e('s_lshl_b32 s59, s2, 11')
for j in range(NEJ):
    e(f's_add_u32 s82, s59, {j*NWG1*2048}'); e(f'v_add_u32 v{V_EI+j}, s82, v2')
    e(f'buffer_load_dword v{V_ES+j}, v{V_EI+j}, s[{S_SRC}:{S_SRC+3}], 0 offen'); vmi('idx')
    e(f'buffer_load_dword v{V_ED+j}, v{V_EI+j}, s[{S_DST}:{S_DST+3}], 0 offen'); vmi('idx')
e('s_waitcnt lgkmcnt(0)')
stamp(3)
e('s_lshl_b32 s88, s80, 16'); e('s_and_b32 s89, s80, 0xffff0000')
e('s_lshl_b32 s90, s81, 16'); e('s_and_b32 s91, s81, 0xffff0000')
e('s_mov_b32 s92, 0x3e22f983'); e('s_mov_b32 s93, 0x40490fdb'); e('s_mov_b32 s94, 0x3e4ccccd')
e('s_mov_b32 s95, 0x40a00000'); e('s_mov_b32 s96, 0x322bcc77'); e('s_mov_b32 s97, 0xbfb8aa3b')
V_PS, V_PD = 40, 44
def posload():
    f = [('WVM', 'idx')]
    for j in range(NEJ):
        for (vi, vp) in ((V_ES + j, V_PS + 2 * j), (V_ED + j, V_PD + 2 * j)):
            f.append([f'v_mul_u32_u24 v13, 6, v{vi}', 'v_and_b32 v13, -4, v13',
                      ('VM', 'pos', f'buffer_load_dwordx2 v[{vp}:{vp+1}], v13, s[{S_POS}:{S_POS+3}], 0 offen')])
    return f
def geom(j):
    R = V_S + 8 * j; T = V_S + 32 + 10 * j; x = T + 9; f = []
    def rb(v): f.extend([f'v_cvt_pk_bf16_f32 v{v}, v{v}, v{v}', f'v_and_b32 v{v}, 0xffff0000, v{v}'])
    for (vi, vp, o) in ((V_ES + j, V_PS + 2 * j, T), (V_ED + j, V_PD + 2 * j, T + 3)):
        f.extend([f'v_and_b32 v{x}, 1, v{vi}', f'v_lshlrev_b32 v{x}, 4, v{x}', f'v_lshrrev_b64 v[{vp}:{vp+1}], v{x}, v[{vp}:{vp+1}]',
                  f'v_lshlrev_b32 v{o}, 16, v{vp}', f'v_and_b32 v{o+1}, 0xffff0000, v{vp}', f'v_lshlrev_b32 v{o+2}, 16, v{vp+1}'])
    for k in range(3): f.append(f'v_sub_f32 v{T+k}, v{T+k}, v{T+3+k}'); rb(T + k)
    for k in range(3): f.append(f'v_mul_f32 v{T+3+k}, v{T+k}, v{T+k}'); rb(T + 3 + k)
    f.extend([f'v_add_f32 v{T+3}, v{T+3}, v{T+4}', f'v_add_f32 v{T+3}, v{T+3}, v{T+5}']); rb(T + 3)
    f.append(f'v_add_f32 v{T+3}, s96, v{T+3}'); rb(T + 3)
    f.extend([f'v_sqrt_f32 v{T+3}, v{T+3}', 's_nop 0']); rb(T + 3)
    f.extend([f'v_rcp_f32 v{T+4}, v{T+3}', 's_nop 0'])
    for k in range(3): f.append(f'v_mul_f32 v{R+3+k}, v{T+k}, v{T+4}'); rb(R + 3 + k)
    f.append(f'v_mul_f32 v{T+5}, s93, v{T+3}'); rb(T + 5)
    f.append(f'v_mul_f32 v{T+5}, s94, v{T+5}'); rb(T + 5)
    f.extend([f'v_mul_f32 v{T+5}, s92, v{T+5}', f'v_fract_f32 v{T+5}, v{T+5}', f'v_cos_f32 v{T+5}, v{T+5}', 's_nop 0']); rb(T + 5)
    f.append(f'v_add_f32 v{T+5}, 1.0, v{T+5}'); rb(T + 5)
    f.append(f'v_mul_f32 v{T+5}, 0.5, v{T+5}'); rb(T + 5)
    for q in range(4):
        y = T + (0, 1, 2, 6)[q]
        f.append(f'v_mul_f32 v{y}, s{88+q}, v{T+3}'); rb(y)
        f.extend([f'v_mul_f32 v{y}, s92, v{y}', f'v_fract_f32 v{y}, v{y}', f'v_sin_f32 v{y}, v{y}', 's_nop 0']); rb(y)
        f.append(f'v_mul_f32 v{y}, v{y}, v{T+4}'); rb(y)
        f.append(f'v_mul_f32 v{y}, v{y}, v{T+5}')
    f.extend([f'v_cvt_pk_bf16_f32 v{R+1}, v{T}, v{T+1}', f'v_cvt_pk_bf16_f32 v{R+2}, v{T+2}, v{T+6}',
              f'v_mov_b32 v{R}, v{V_ES+j}', f'v_mov_b32 v{R+6}, v{V_ED+j}', f'v_mov_b32 v{R+7}, 0'])
    f.extend([f'v_lshlrev_b32 v{T+7}, 2, v{V_ED+j}', f'v_cmp_gt_f32 vcc, s95, v{T+3}', f'v_cmp_gt_u32 s[98:99], s38, v{V_EI+j}',
              f'v_mov_b32 v{T+8}, 1', 's_nop 0', 's_and_b64 vcc, vcc, s[98:99]', f'v_cndmask_b32 v{T+7}, v18, v{T+7}, vcc'])
    return f
def atom(j):
    T = V_S + 32 + 10 * j
    return [('VM', 'atom', f'buffer_atomic_add v{T+8}, v{T+7}, s[{S_CNT}:{S_CNT+3}], 0 offen sc0 sc1')]
e('v_mov_b32 v18, 0x7ffffff0')
e('v_mov_b32 v22, 1.0'); e('v_mov_b32 v23, 1.0')
V_H, V_ACC, V_AF, V_ET = 128, 192, 224, 240
NPF = 3
steps = [(c, j) for c in range(8) for j in range(16)]
def aread(idx):
    c, j = steps[idx]
    slot = c % 4; r = V_AF + 4 * (idx % 4)
    if c < 4:
        base = V_A1; offs = [slot * 32768 + j * 2048 + u * 512 for u in range(2)]
        if slot >= 2: base = 20; offs = [o - 65536 for o in offs]
    else:
        m_ = 1 if (j & 2) else 0
        base = VA2[(j >> 2, m_)]
        offs = [slot * 32768 + (j & 3) * 2048 + u * 1024 - 4096 * m_ for u in range(2)]
        if slot >= 2: base = base + 32; offs = [o - 65536 for o in offs]
    return [('LG', f'a{idx}', f'ds_read_b64_tr_b16 v[{r}:{r+1}], v{base} offset:{offs[0]}'),
            ('LG', f'a{idx}', f'ds_read_b64_tr_b16 v[{r+2}:{r+3}], v{base} offset:{offs[1]}')]
def xread(c):
    return [('LG', f'xr{c}', f'ds_read_b128 v[{V_X+8*(c%2)}:{V_X+8*(c%2)+3}], v{V_XR} offset:{(c%2)*2048}'),
            ('LG', f'xr{c}', f'ds_read_b128 v[{V_X+8*(c%2)+4}:{V_X+8*(c%2)+7}], v{V_XR} offset:{(c%2)*2048+1024}')]
V_X, V_O = 48, 128
def epilogue(c):
    acc = V_ACC + 16 * (c % 2)
    f = []
    if c < 4:
        o = V_H + 16 * c
        for p in (range(0, 8, 2) if P['PK'] else []):
            xa, xb = acc + 2 * p, acc + 2 * p + 2
            ta, tb = V_ET, V_ET + 2
            f += [f'v_pk_mul_f32 v[{ta}:{ta+1}], s[96:97], v[{xa}:{xa+1}] op_sel:[1,0] op_sel_hi:[1,1]', f'v_pk_mul_f32 v[{tb}:{tb+1}], s[96:97], v[{xb}:{xb+1}] op_sel:[1,0] op_sel_hi:[1,1]',
                  f'v_exp_f32 v{ta}, v{ta}', f'v_exp_f32 v{ta+1}, v{ta+1}', f'v_exp_f32 v{tb}, v{tb}', f'v_exp_f32 v{tb+1}, v{tb+1}',
                  f'v_pk_add_f32 v[{ta}:{ta+1}], v[{ta}:{ta+1}], v[22:23]', f'v_pk_add_f32 v[{tb}:{tb+1}], v[{tb}:{tb+1}], v[22:23]',
                  f'v_rcp_f32 v{ta}, v{ta}', f'v_rcp_f32 v{ta+1}, v{ta+1}', f'v_rcp_f32 v{tb}, v{tb}', f'v_rcp_f32 v{tb+1}, v{tb+1}',
                  f'v_pk_mul_f32 v[{ta}:{ta+1}], v[{xa}:{xa+1}], v[{ta}:{ta+1}]', f'v_pk_mul_f32 v[{tb}:{tb+1}], v[{xb}:{xb+1}], v[{tb}:{tb+1}]',
                  f'v_cvt_pk_bf16_f32 v{o + p}, v{ta}, v{ta+1}', f'v_cvt_pk_bf16_f32 v{o + p + 1}, v{tb}, v{tb+1}']
        for p in ([] if P['PK'] else range(8)):
            x0, x1 = acc + 2 * p, acc + 2 * p + 1
            t0, t1 = V_ET + 2 * (p % 2), V_ET + 2 * (p % 2) + 1
            f += [f'v_mul_f32 v{t0}, s97, v{x0}', f'v_mul_f32 v{t1}, s97, v{x1}',
                  f'v_exp_f32 v{t0}, v{t0}', f'v_exp_f32 v{t1}, v{t1}',
                  f'v_add_f32 v{t0}, 1.0, v{t0}', f'v_add_f32 v{t1}, 1.0, v{t1}',
                  f'v_rcp_f32 v{t0}, v{t0}', f'v_rcp_f32 v{t1}, v{t1}',
                  f'v_mul_f32 v{t0}, v{x0}, v{t0}', f'v_mul_f32 v{t1}, v{x1}, v{t1}',
                  f'v_cvt_pk_bf16_f32 v{o + p}, v{t0}, v{t1}']
        f += [('LG', f'xw{c}', f'ds_write_b128 v{V_XW}, v[{o}:{o+3}] offset:{(c%2)*2048}'),
              ('LG', f'xw{c}', f'ds_write_b128 v{V_XW}, v[{o+4}:{o+7}] offset:{(c%2)*2048+1024}')]
    else:
        for q in range(2):
            b = V_ET + 4 * q
            for p in range(4): f.append(f'v_cvt_pk_bf16_f32 v{b+p}, v{acc + 8*q + 2*p}, v{acc + 8*q + 2*p + 1}')
            f.append(('LG', f'sw{c}', f'ds_write_b128 v{V_SW + q}, v[{b}:{b+3}]'))
        for i in range(2): f.append(('LG', f'sr{c}_{i}', f'ds_read_b128 v[{V_ET+8+4*i}:{V_ET+8+4*i+3}], v{V_SR} offset:{1024*i}'))
        f += ['s_nop 0'] * 3
        for i in range(2):
            f.append([('WLG', f'sr{c}_{i}'), ('VM', 'st', f'buffer_store_dwordx4 v[{V_ET+8+4*i}:{V_ET+8+4*i+3}], v{V_PA}, s[{S_PHI}:{S_PHI+3}], s{69+2*(c-4)+i} offen {P["ST_PHI"]}')])
    return f
def xread_into(c):
    o = V_H + 16 * c + 8
    return [('LG', f'xr{c}', f'ds_read_b128 v[{o}:{o+3}], v{V_XR} offset:{(c%2)*2048}'),
            ('LG', f'xr{c}', f'ds_read_b128 v[{o+4}:{o+7}], v{V_XR} offset:{(c%2)*2048+1024}')]
for c_ in range(4):
    for i in range(2): e(f's_add_u32 s{69+2*c_+i}, s{64+c_}, {i*16*1536}')
pending = []; extra = []
for idx, (c, j) in enumerate(steps):
    if j == 0:
        if f'dma{c}' in vm: vm_wait_for(f'dma{c}')
        if c in (2, 3, 4) : lg_wait_for(f'xw{ {2:0, 3:1, 4:3}[c] }')
        e('s_barrier')
        if c in (0, 1, 4, 7): stamp({0: 5, 1: 6, 4: 7, 7: 8}[c])
        be = 1 if (c >= 4 and P['DUMMYT']) else 0
        for k in range(NPF): emit_f(aread(idx + k))
        if c == 2: emit_f(xread_into(0))
        if c == 3: emit_f(xread_into(1))
        if c == 4: emit_f(xread_into(2) + xread_into(3))
        if c == 5:
            for q_ in range(8): e(f'v_add_u32 v{84+q_}, 0x10000, v{52+q_}')
        if c == 0: extra += dma_list(2) + dma_list(3)
        if 1 <= c <= 4: extra += dma_list(c + 3)
        if c == 1 and not P['NOEDGE']: extra += posload()
        if c == 3 and not P['NOEDGE']:
            e('v_mov_b32 v13, 0')
            e(f'buffer_load_dword v38, v13, s[{S_DBG}:{S_DBG+3}], 0 offen sc0 sc1'); vmi('poll')
        if c == 4 and not P['NOEDGE']:
            extra += [('WVM', 'pos')]
            for jj in range(NEJ): extra += geom(jj)
        if c == 7 and not P['NOEDGE']:
            vm_wait_for('poll')
            L('K1_poll')
            e('v_readfirstlane_b32 s82, v38'); e('s_cmp_ge_u32 s82, 16'); e('s_cbranch_scc1 K1_polled')
            e('s_sleep 4'); e('v_mov_b32 v13, 0')
            e(f'buffer_load_dword v38, v13, s[{S_DBG}:{S_DBG+3}], 0 offen sc0 sc1')
            e('s_waitcnt vmcnt(0)'); e('s_branch K1_poll')
            L('K1_polled')
            assert not extra, len(extra)
            for jj in range(NEJ): emit_f(atom(jj))
    lg_wait_for(f'a{idx}')
    if c == 4 and j == 8: lg_wait_for('xr3')
    acc = V_ACC + 16 * (c % 2); a = V_AF + 4 * (idx % 4)
    if c < 4: bsrc = V_S + 4 * j
    else:
        t = j >> 1
        bsrc = f'HS{t}_{j&1}'
    cin = '0' if j == 0 else f'v[{acc}:{acc+15}]'
    if c < 4:
        e(f'v_mfma_f32_32x32x16_bf16 v[{acc}:{acc+15}], v[{a}:{a+3}], v[{bsrc}:{bsrc+3}], {cin}')
    else:
        b = V_H + 8 * t + 4 * (j & 1)
        e(f'v_mfma_f32_32x32x16_bf16 v[{acc}:{acc+15}], v[{a}:{a+3}], v[{b}:{b+3}], {cin}')
    nxt = idx + NPF
    if nxt < len(steps) and steps[nxt][0] == c: emit_f(aread(nxt))
    if j == 0 and c > 0 and c != 4:
        assert not pending
        pending = epilogue(c - 1)
    nf = P['FILL'] if c < 4 else P['FILL2']
    if j >= 2:
        n = nf if j < 15 else len(pending)
        k = min(n, len(pending))
        for _ in range(k): emit_f(pending.pop(0))
        nx = (1 if c < 4 else max(0, nf - k))
        for _ in range(min(nx, len(extra))): emit_f(extra.pop(0))
    if c == 3 and j == 15:
        e('s_barrier'); e('s_nop 15')
        emit_f(epilogue(3))
assert not extra, len(extra)
e('s_nop 15')
emit_f(epilogue(7))
stamp(9)
if not P['NOEDGE']:
    vm_wait_for('atom')
    for j in range(NEJ):
        R = V_S + 8 * j; T = V_S + 32 + 10 * j
        e(f'v_cmp_gt_u32 vcc, v18, v{T+7}'); e(f'v_cmp_gt_u32 s[82:83], {CAP}, v{T+8}')
        e(f'v_lshlrev_b32 v2, 10, v{V_ED+j}'); e(f'v_lshl_add_u32 v2, v{T+8}, 5, v2')
        e('s_and_b64 s[84:85], vcc, s[82:83]'); e('s_andn2_b64 s[86:87], vcc, s[82:83]')
        e('v_cndmask_b32 v2, v18, v2, s[84:85]')
        e(f'buffer_store_dwordx4 v[{R}:{R+3}], v2, s[{S_BKT}:{S_BKT+3}], 0 offen')
        e(f'buffer_store_dwordx4 v[{R+4}:{R+7}], v2, s[{S_BKT}:{S_BKT+3}], 0 offen offset:16')
        e('s_cmp_eq_u64 s[86:87], 0'); e(f's_cbranch_scc1 K1_noovf{j}')
        e('s_mov_b64 exec, s[86:87]')
        e(f'v_mov_b32 v2, {N*4}'); e('v_mov_b32 v4, 1')
        e(f'buffer_atomic_add v4, v2, s[{S_CNT}:{S_CNT+3}], 0 offen sc0 sc1')
        e('s_waitcnt vmcnt(0)')
        e('v_lshlrev_b32 v2, 5, v4')
        e(f'buffer_store_dwordx4 v[{R}:{R+3}], v2, s[{S_OVF}:{S_OVF+3}], 0 offen')
        e(f'buffer_store_dwordx4 v[{R+4}:{R+7}], v2, s[{S_OVF}:{S_OVF+3}], 0 offen offset:16')
        e('s_mov_b64 exec, -1')
        L(f'K1_noovf{j}')
e('s_cmp_lg_u32 s2, 16'); e('s_cbranch_scc1 K1_nopack2')
e('s_cmp_ge_u32 s4, 3'); e('s_cbranch_scc1 K1_nopack2')
srd_off(S_WPK, 78, 79, WS_WPK, 6144)
e('s_mov_b32 s82, 0x05040100'); e('s_mov_b32 s83, 0x07060302')
e('s_lshl_b32 s7, s4, 11')
e(f'v_lshl_add_u32 v2, v{V_LANE}, 4, s7')
for jp in range(2):
    a_, b_ = PKR[2 * jp], PKR[2 * jp + 1]
    for c in range(4):
        e(f'v_perm_b32 v{20+4*jp+c}, v{b_+(c>>1)}, v{a_+(c>>1)}, s{82+(c&1)}')
    e(f'buffer_store_dwordx4 v[{20+4*jp}:{23+4*jp}], v2, s[{S_WPK}:{S_WPK+3}], 0 offen offset:{jp*1024}')
L('K1_nopack2')
rstamp(1)
L('K1_end')
e('s_endpgm')

kstart(K2)
NRND = (DEPTH + 1) // 2
e(f's_cmp_ge_u32 s2, {N // K2W}'); e('s_cbranch_scc1 K2_end')
e('s_load_dwordx2 s[4:5], s[0:1], 0')
e('s_load_dwordx2 s[6:7], s[0:1], 64')
e('s_load_dwordx2 s[8:9], s[0:1], 80')
e('v_lshrrev_b32 v1, 6, v0'); e('v_and_b32 v0, 63, v0'); e('v_readfirstlane_b32 s3, v1')
e(f's_mul_i32 s2, s2, {K2W}'); e('s_add_u32 s2, s2, s3')
e('v_lshlrev_b32 v1, 3, v0')
e('v_lshlrev_b32 v2, 4, v0')
e('s_waitcnt lgkmcnt(0)')
e(f's_add_u32 s10, s8, {WS_CNT}'); e('s_addc_u32 s11, s9, 0')
e(f's_add_u32 s12, s8, {WS_BKT}'); e('s_addc_u32 s13, s9, 0')
e('s_lshl_b32 s14, s2, 2'); e('s_lshl_b32 s15, s2, 10')
e('s_load_dword s16, s[10:11], s14')
RS = 40
for i in range(0, DEPTH, 2):
    if i + 1 < DEPTH: e(f's_load_dwordx16 s[{RS+8*i}:{RS+8*i+15}], s[12:13], s15 offset:{32*i}')
    else: e(f's_load_dwordx8 s[{RS+8*i}:{RS+8*i+7}], s[12:13], s15 offset:{32*i}')
SV, OUT, PHI, WPK = 20, 24, 28, 32
srd(SV, 4, 5, N * 2048); srd(OUT, 6, 7, N * 2048); srd(PHI, 8, 9, PHI_BYTES); srd_off(WPK, 8, 9, WS_WPK, 6144)
e('s_lshl_b32 s17, s2, 11')
VW, VACC, VB, VT = 4, 28, 44, 44 + 12 * DEPTH
for g in range(4):
    e(f'buffer_load_dwordx2 v[{VB+2*g}:{VB+2*g+1}], v1, s[{SV}:{SV+3}], s17 offen offset:{512*g}')
e('s_waitcnt lgkmcnt(0)')
e('s_cmp_eq_u32 s16, 0'); e('s_cbranch_scc0 K2_some')
e('s_waitcnt vmcnt(0)')
for g in range(4):
    e(f'buffer_store_dwordx2 v[{VB+2*g}:{VB+2*g+1}], v1, s[{OUT}:{OUT+3}], s17 offen offset:{512*g} {P["ST_OUT"]}')
e('s_endpgm')
L('K2_some')
for q in range(6):
    e(f'buffer_load_dwordx4 v[{VW+4*q}:{VW+4*q+3}], v2, s[{WPK}:{WPK+3}], 0 offen offset:{1024*(q%4)}' if q < 4 else
      f'buffer_load_dwordx4 v[{VW+4*q}:{VW+4*q+3}], v2, s[{WPK}:{WPK+3}], s19 offen offset:{1024*(q%4)}')
    if q == 0: e('s_movk_i32 s19, 4096')
e('s_waitcnt vmcnt(6)')
for g in range(4):
    for p in range(2):
        e(f'v_lshlrev_b32 v{VACC+4*g+2*p}, 16, v{VB+2*g+p}'); e(f'v_and_b32 v{VACC+4*g+2*p+1}, 0xffff0000, v{VB+2*g+p}')
e(f's_min_u32 s18, s16, {CAP}')
def issue(s):
    r = RS + 8 * s; b = VB + 12 * s
    e(f's_mul_i32 s34, s{r}, 1536'); e(f's_lshl_b32 s35, s{r}, 11')
    for g in range(3): e(f'buffer_load_dwordx2 v[{b+2*g}:{b+2*g+1}], v1, s[{PHI}:{PHI+3}], s34 offen offset:{512*g}')
    for g in range(3): e(f'buffer_load_dwordx2 v[{b+6+2*g}:{b+6+2*g+1}], v1, s[{SV}:{SV+3}], s35 offen offset:{512*(g+1)}')
def process(r, b):
    t = VT
    def dots(g, o):
        for c in range(4): e(f'v_dot2_f32_bf16 v{o+c}, v{VW+8*g+c}, s{r+1}, 0')
        for c in range(4): e(f'v_dot2_f32_bf16 v{o+c}, v{VW+8*g+4+c}, s{r+2}, v{o+c}')
    def unpack(src, o):
        for p in range(2):
            e(f'v_lshlrev_b32 v{o+2*p}, 16, v{src+p}'); e(f'v_and_b32 v{o+2*p+1}, 0xffff0000, v{src+p}')
    dots(0, t); unpack(b, t + 4)
    for c in range(4): e(f'v_fmac_f32 v{VACC+c}, v{t+c}, v{t+4+c}')
    dots(2, t); unpack(b + 4, t + 4)
    for c in range(4): e(f'v_mul_f32 v{t+c}, v{t+c}, v{t+4+c}')
    for k in range(3):
        for c in range(4): e(f'v_fmac_f32 v{VACC+4+4*k+c}, s{r+3+k}, v{t+c}')
    dots(1, t); unpack(b + 2, t + 4)
    for c in range(4): e(f'v_mul_f32 v{t+c}, v{t+c}, v{t+4+c}')
    for k in range(3):
        unpack(b + 6 + 2 * k, t + 4)
        for c in range(4): e(f'v_fmac_f32 v{VACC+4+4*k+c}, v{t+c}, v{t+4+c}')
L('K2_round')
for m in range(1, DEPTH):
    e(f's_cmp_eq_u32 s18, {m}'); e(f's_cbranch_scc1 K2_I{m-1}')
for s in range(DEPTH - 1, -1, -1):
    L(f'K2_I{s}'); issue(s)
for m in range(1, DEPTH):
    e(f's_cmp_eq_u32 s18, {m}'); e(f's_cbranch_scc1 K2_B{m-1}')
for s in range(DEPTH - 1, -1, -1):
    L(f'K2_B{s}'); e(f's_waitcnt vmcnt({6*s})'); process(RS + 8 * s, VB + 12 * s)
e(f's_cmp_le_u32 s18, {DEPTH}'); e('s_cbranch_scc1 K2_bdone')
e(f's_sub_u32 s18, s18, {DEPTH}'); e(f's_add_u32 s15, s15, {32*DEPTH}')
for i in range(0, DEPTH, 2):
    if i + 1 < DEPTH: e(f's_load_dwordx16 s[{RS+8*i}:{RS+8*i+15}], s[12:13], s15 offset:{32*i}')
    else: e(f's_load_dwordx8 s[{RS+8*i}:{RS+8*i+7}], s[12:13], s15 offset:{32*i}')
e('s_waitcnt lgkmcnt(0)')
e('s_branch K2_round')
L('K2_bdone')
e(f's_cmp_le_u32 s16, {CAP}'); e('s_cbranch_scc1 K2_fin')
e(f's_load_dword s18, s[10:11], {N*4}')
e(f's_add_u32 s12, s8, {WS_OVF}'); e('s_addc_u32 s13, s9, 0')
e('s_mov_b32 s15, 0')
e('s_waitcnt lgkmcnt(0)')
e('s_lshl_b32 s18, s18, 5')
L('K2_ovf')
e('s_cmp_ge_u32 s15, s18'); e('s_cbranch_scc1 K2_fin')
e(f's_load_dwordx8 s[{RS}:{RS+7}], s[12:13], s15')
e('s_add_u32 s15, s15, 32')
e('s_waitcnt lgkmcnt(0)')
e(f's_cmp_eq_u32 s{RS+6}, s2'); e('s_cbranch_scc0 K2_ovf')
issue(0); e('s_waitcnt vmcnt(0)'); process(RS, VB)
e('s_branch K2_ovf')
L('K2_fin')
for g in range(4):
    for p in range(2):
        e(f'v_cvt_pk_bf16_f32 v{VT+2*(g%2)+p}, v{VACC+4*g+2*p}, v{VACC+4*g+2*p+1}')
    e(f'buffer_store_dwordx2 v[{VT+2*(g%2)}:{VT+2*(g%2)+1}], v1, s[{OUT}:{OUT+3}], s17 offen offset:{512*g} {P["ST_OUT"]}')
    if g == 1: e('s_nop 1')
L('K2_end')
e('s_endpgm')

out.append('.section .rodata,"a"')
def desc(name, vg, sg):
    out.append('.p2align 6'); out.append(f'.amdhsa_kernel {name}')
    out.append(f'  .amdhsa_next_free_vgpr {vg}'); out.append(f'  .amdhsa_next_free_sgpr {sg}')
    out.append(f'  .amdhsa_accum_offset {(vg+3)//4*4}')
    out.append('  .amdhsa_group_segment_fixed_size 0'); out.append('  .amdhsa_kernarg_size 88')
    out.append('  .amdhsa_user_sgpr_count 2'); out.append('  .amdhsa_user_sgpr_kernarg_segment_ptr 1')
    out.append('  .amdhsa_system_sgpr_workgroup_id_x 1'); out.append('.end_amdhsa_kernel')
desc(K1, 256, 102)
desc(K2, VT + 8, RS + 8 * DEPTH)
open(sys.argv[1], 'w').write('\n'.join(out) + '\n')
print('K2 vgprs', VT + 8, 'lines', len(out))
```

```python
import sys
P = dict(DEF3=1, XMAP=1, PK=1, NOEDGE=0, NOGEMM=0, NOATOM=0, DUMMYT=0, ROT=3, ROTSH=3, STAMP=0, RST=0, DEPTH=4, ST_PHI='', ST_OUT='', FILL=7, FILL2=8, K2WAVES=4)
for a in sys.argv[2:]:
    k, v = a.split('=')
    P[k] = int(v) if v.lstrip('-').isdigit() else v
DEPTH = P['DEPTH']
N, E, D = 10000, 160000, 256
CAP = 32
PHI_BYTES = N * 768 * 2
WS_CNT = 0x1000000
WS_WPK = 0x1010000
WS_BKT = 0x1100000
WS_OVF = 0x2000000
NWG1 = 237
GRID1 = 240 if P['XMAP'] else NWG1
out = []
def e(s): out.append('    ' + s)
def L(s): out.append(s + ':')
def srd(s, lo, hi, nbytes):
    e(f's_mov_b32 s{s}, s{lo}'); e(f's_and_b32 s{s+1}, s{hi}, 0xffff')
    e(f's_mov_b32 s{s+2}, {nbytes}'); e(f's_mov_b32 s{s+3}, 0x20000')
def srd_off(s, lo, hi, off, nbytes):
    e(f's_add_u32 s{s}, s{lo}, {off}'); e(f's_addc_u32 s{s+1}, s{hi}, 0')
    e(f's_and_b32 s{s+1}, s{s+1}, 0xffff')
    e(f's_mov_b32 s{s+2}, {nbytes}'); e(f's_mov_b32 s{s+3}, 0x20000')

hdr = open('gather_scatter__molecular_angular_painn__graph.s.ref').read().split('\n')
for l in hdr:
    if l.startswith('; @launch') or l.startswith('; Override'): break
    out.append(l)
K1 = 'painn_prep_kernel'
K2 = 'gather_scatter__molecular_angular_painn__graph_kernel'
K2W = P['K2WAVES']
out.append(f'; @launch kernel={K1} grid=({GRID1},1,1) block=(512,1,1) lds=163840')
out.append(f'; @launch kernel={K2} grid=({N//K2W},1,1) block=({64*K2W},1,1) lds=0')
out.append('.amdgcn_target "amdgcn-amd-amdhsa--gfx950"')
out.append('.text')
def kstart(name):
    out.append(f'.globl {name}'); out.append('.p2align 8'); out.append(f'.type {name},@function'); L(name)

vm = []
def vmi(tag): vm.append(tag)
def vm_wait_for(tag):
    idx = max(i for i, t in enumerate(vm) if t == tag)
    n = len(vm) - 1 - idx
    assert n < 64, n
    e(f's_waitcnt vmcnt({n})')

kstart(K1)
def stamp(k):
    if not P['STAMP']: return
    e('s_memtime s[100:101]'); e('s_waitcnt lgkmcnt(0)')
    e(f's_cmp_eq_u32 s2, 100'); e(f's_cbranch_scc0 ST{k}'); e('s_cmp_eq_u32 s4, 0'); e(f's_cbranch_scc0 ST{k}')
    e('v_mov_b32 v24, s100'); e(f'v_mov_b32 v25, {4*k}')
    e(f'buffer_store_dword v24, v25, s[{S_DBG}:{S_DBG+3}], 0 offen'); L(f'ST{k}')
S_SV, S_W1, S_W2, S_PHI, S_POS, S_CNT, S_BKT, S_SRC, S_DST = 8, 12, 16, 20, 24, 28, 32, 36, 40
S_OVF, S_DBG, S_WR, S_WPK = 44, 48, 52, 56
if P['XMAP']:
    e('s_cmp_ge_u32 s2, 240'); e('s_cbranch_scc1 K1_end')
    e('s_and_b32 s7, s2, 7'); e('s_lshr_b32 s6, s2, 3'); e('s_mul_hi_u32 s5, s6, 0x55555556')
    e('s_mul_i32 s3, s5, 3'); e('s_sub_u32 s6, s6, s3'); e('s_lshl_b32 s5, s5, 3'); e('s_add_u32 s5, s5, s7')
    e('s_cmp_ge_u32 s5, 79'); e('s_cbranch_scc1 K1_end')
    e('s_mul_i32 s2, s5, 3'); e('s_add_u32 s2, s2, s6')
else:
    e(f's_cmp_ge_u32 s2, {NWG1}'); e('s_cbranch_scc1 K1_end')
e('s_load_dwordx4 s[60:63], s[0:1], 0')
e('s_load_dwordx4 s[64:67], s[0:1], 16')
e('s_load_dwordx4 s[68:71], s[0:1], 32')
e('s_load_dwordx4 s[72:75], s[0:1], 48')
e('s_load_dwordx4 s[76:79], s[0:1], 72')
V_LANE, V_T0, V_T1, V_T2 = 1, 2, 3, 4
e(f'v_and_b32 v{V_LANE}, 63, v0')
e('v_lshrrev_b32 v2, 6, v0'); e('s_nop 0'); e('v_readfirstlane_b32 s4, v2')
e('s_mul_hi_u32 s5, s2, 0x55555556')
e('s_mul_i32 s6, s5, 3'); e('s_sub_u32 s6, s2, s6')
e('s_waitcnt lgkmcnt(0)')
e('s_load_dwordx2 s[80:81], s[68:69], 0')
srd(S_SV, 60, 61, N * 2048); srd(S_POS, 62, 63, N * 6)
srd(S_SRC, 64, 65, E * 4); srd(S_DST, 66, 67, E * 4)
srd(S_W1, 70, 71, 256 * 512); srd(S_W2, 72, 73, 256 * 1536); srd(S_WR, 74, 75, 4 * 1536)
srd(S_DBG, 76, 77, 256); srd(S_PHI, 78, 79, PHI_BYTES)
srd_off(S_CNT, 78, 79, WS_CNT, (N + 16) * 4); srd_off(S_WPK, 78, 79, WS_WPK, 6144)
srd_off(S_BKT, 78, 79, WS_BKT, N * CAP * 32); srd_off(S_OVF, 78, 79, WS_OVF, E * 32)
stamp(1)
def rstamp(k):
    if not P['RST']: return
    e('s_memrealtime s[100:101]'); e('s_waitcnt lgkmcnt(0)')
    e('s_cmp_eq_u32 s4, 0'); e(f's_cbranch_scc0 RST{k}')
    e('v_mov_b32 v24, s100'); e(f's_lshl_b32 s100, s2, 3'); e(f's_add_u32 s100, s100, {0x8000000 + 4*k}'); e('v_mov_b32 v25, s100')
    e('global_store_dword v25, v24, s[78:79]'); L(f'RST{k}')
rstamp(0)
V_Z = 8
e('s_cmp_ge_u32 s2, 16'); e('s_cbranch_scc1 K1_nozero')
e('s_cmp_lg_u32 s4, 0'); e('s_cbranch_scc1 K1_nozero')
for i in range(4): e(f'v_mov_b32 v{V_Z+i}, 0')
e('s_mul_i32 s7, s2, 2560')
e(f'v_lshl_add_u32 v2, v{V_LANE}, 4, s7')
e(f'buffer_store_dwordx4 v[{V_Z}:{V_Z+3}], v2, s[{S_CNT}:{S_CNT+3}], 0 offen sc0 sc1')
e(f'buffer_store_dwordx4 v[{V_Z}:{V_Z+3}], v2, s[{S_CNT}:{S_CNT+3}], 0 offen offset:1024 sc0 sc1')
e(f'v_cmp_gt_u32 vcc, 32, v{V_LANE}'); e('s_and_saveexec_b64 s[82:83], vcc')
e(f'buffer_store_dwordx4 v[{V_Z}:{V_Z+3}], v2, s[{S_CNT}:{S_CNT+3}], 0 offen offset:2048 sc0 sc1')
e('s_mov_b64 exec, s[82:83]')
L('K1_nozero')
e('s_cmp_lg_u32 s2, 16'); e('s_cbranch_scc1 K1_nopack')
e('s_cmp_ge_u32 s4, 3'); e('s_cbranch_scc1 K1_nopack')
e('s_lshl_b32 s7, s4, 9')
e(f'v_lshl_add_u32 v2, v{V_LANE}, 3, s7')
e('s_movk_i32 s82, 3072')
PKR = [48, 50, 60, 62]
for j in range(4): e(f'buffer_load_dwordx2 v[{PKR[j]}:{PKR[j]+1}], v2, s[{S_WR}:{S_WR+3}], {"0" if j < 2 else "s82"} offen offset:{(j%2)*1536}')
L('K1_nopack')
e('s_and_b32 s56, s4, 3'); e('s_lshr_b32 s57, s4, 2')
e(f's_lshr_b32 s58, s2, {P["ROTSH"]}'); e(f's_and_b32 s58, s58, {P["ROT"]}')
for c_ in range(4):
    e(f's_add_u32 s{64+c_}, s58, {c_}'); e(f's_and_b32 s{64+c_}, s{64+c_}, 3'); e(f's_lshl_b32 s{64+c_}, s{64+c_}, 7')
V_PA, V_D1, V_D2 = 6, 7, 8
e(f'v_lshrrev_b32 v2, 4, v{V_LANE}'); e('v_and_b32 v2, 1, v2'); e('v_mul_u32_u24 v2, 6, v2')
e(f'v_and_b32 v13, 7, v{V_LANE}'); e('v_xor_b32 v2, v2, v13'); e('v_lshlrev_b32 v2, 4, v2')
e(f'v_lshrrev_b32 v13, 3, v{V_LANE}')
e(f'v_lshl_add_u32 v{V_D1}, v13, 9, v2')
e('v_mul_u32_u24 v13, 1536, v13'); e(f'v_add_u32 v{V_D2}, v13, v2')
e('s_lshl_b32 s84, s4, 12')
e('s_lshl_b32 s85, s4, 14')
e('s_mul_i32 s86, s4, 49152')
e('s_lshl_b32 s82, s6, 9'); e('s_add_u32 s86, s86, s82')
def dma_list(c):
    slot = c % 4; r = []
    for i in range(4):
        if c < 4:
            r.append([f's_add_u32 m0, s84, {slot*32768 + i*1024}', f's_add_u32 s87, s85, {i*8*512}', f's_add_u32 s87, s87, s{64+c}',
                      ('VM', f'dma{c}', f'buffer_load_dwordx4 v{V_D1}, s[{S_W1}:{S_W1+3}], s87 offen lds')])
        else:
            r.append([f's_add_u32 m0, s84, {slot*32768 + i*1024}', f's_add_u32 s87, s86, {i*8*1536}', f's_add_u32 s87, s87, s{64+c-4}',
                      ('VM', f'dma{c}', f'buffer_load_dwordx4 v{V_D2}, s[{S_W2}:{S_W2+3}], s87 offen lds')])
    return r
lg = []
def lg_wait_for(tag):
    idx = max(i for i, t in enumerate(lg) if t == tag)
    n = len(lg) - 1 - idx
    e(f's_waitcnt lgkmcnt({min(n, 15)})')
def emit_f(x):
    if isinstance(x, list):
        for y in x: emit_f(y)
    elif isinstance(x, tuple):
        if x[0] == 'VM': e(x[2]); vmi(x[1])
        elif x[0] == 'LG': e(x[2]); lg.append(x[1])
        elif x[0] == 'WLG': lg_wait_for(x[1])
        elif x[0] == 'WVM': vm_wait_for(x[1])
        elif x[0] == 'LBL': L(x[1])
    else: e(x)
for g in dma_list(0): emit_f(g)
V_S = 64
e('s_lshl_b32 s7, s5, 7'); e('s_lshl_b32 s82, s56, 5'); e('s_add_u32 s7, s7, s82')
e(f'v_lshrrev_b32 v3, 5, v{V_LANE}')
e(f'v_and_b32 v4, 31, v{V_LANE}')
e('s_lshl_b32 s82, s57, 4'); e('v_add_u32 v5, s82, v3')
e('s_lshl_b32 s83, s56, 14'); e('s_add_u32 s83, s83, 65536')
e('s_lshl_b32 s82, s57, 13'); e('s_add_u32 s59, s83, s82')
for i in range(8):
    e(f'v_add_u32 v13, {2*i}, v5'); e('v_and_b32 v2, 15, v13'); e('v_xor_b32 v2, v2, v4'); e('v_lshlrev_b32 v2, 4, v2')
    e('v_add_u32 v13, s7, v13'); e(f's_add_u32 m0, s59, {i*1024}'); e('v_lshl_add_u32 v2, v13, 11, v2')
    e(f'buffer_load_dwordx4 v2, s[{S_SV}:{S_SV+3}], 0 offen lds'); vmi('S')
for g in dma_list(1): emit_f(g)
e(f'v_lshrrev_b32 v2, 2, v{V_LANE}'); e('v_add_u32 v2, s7, v2')
e('s_mov_b32 s82, 1536'); e(f'v_mul_lo_u32 v{V_PA}, v2, s82')
e(f'v_and_b32 v2, 3, v{V_LANE}'); e(f'v_lshl_add_u32 v{V_PA}, v2, 4, v{V_PA}')
e('s_lshl_b32 s82, s6, 9'); e('s_lshl_b32 s59, s57, 6'); e('s_add_u32 s82, s82, s59'); e(f'v_add_u32 v{V_PA}, s82, v{V_PA}')
V_SW, V_SR, V_SA, V_XW, V_XR = 32, 34, 35, 36, 37
e('s_lshl_b32 s82, s4, 11'); e('s_add_u32 s82, s82, 131072')
e('v_lshrrev_b32 v2, 1, v4'); e('v_and_b32 v2, 3, v2')
for q in range(2):
    e(f'v_lshl_add_u32 v13, v3, 1, {q}'); e('v_xor_b32 v13, v13, v2'); e('v_lshlrev_b32 v13, 4, v13')
    e(f'v_lshl_add_u32 v13, v4, 6, v13'); e(f'v_add_u32 v{V_SW+q}, s82, v13')
e(f'v_lshrrev_b32 v2, 3, v{V_LANE}'); e('v_and_b32 v2, 3, v2'); e(f'v_and_b32 v13, 3, v{V_LANE}'); e('v_xor_b32 v13, v13, v2')
e('v_lshlrev_b32 v13, 4, v13'); e(f'v_lshrrev_b32 v2, 2, v{V_LANE}'); e('v_lshl_add_u32 v13, v2, 6, v13'); e(f'v_add_u32 v{V_SR}, s82, v13')
e(f'v_lshlrev_b32 v2, 4, v{V_LANE}'); e('s_lshl_b32 s82, s4, 12'); e('s_add_u32 s82, s82, 131072'); e(f'v_add_u32 v{V_XW}, s82, v2')
e('s_xor_b32 s82, s4, 4'); e('s_lshl_b32 s82, s82, 12'); e('s_add_u32 s82, s82, 131072'); e(f'v_add_u32 v{V_XR}, s82, v2')
e('v_and_b32 v2, 15, v4'); e('v_xor_b32 v19, v2, v3'); e(f'v_lshlrev_b32 v{V_SA}, 9, v4'); e(f'v_add_u32 v{V_SA}, s83, v{V_SA}')
V_A1, V_A2 = 9, 10
e(f'v_lshrrev_b32 v16, 2, v{V_LANE}'); e('v_and_b32 v16, 3, v16')
e(f'v_and_b32 v4, 3, v{V_LANE}')
e(f'v_lshrrev_b32 v13, 4, v{V_LANE}'); e('v_and_b32 v13, 1, v13')
e('v_lshrrev_b32 v14, 1, v16'); e('v_mul_u32_u24 v14, 6, v14')
e('v_lshlrev_b32 v15, 7, v16')
e('s_lshl_b32 s82, s57, 2')
e('v_lshl_add_u32 v16, v13, 2, v4'); e('v_lshrrev_b32 v17, 1, v16'); e('v_add_u32 v17, s82, v17')
e('v_xor_b32 v17, v17, v14'); e('v_and_b32 v16, 1, v16'); e('v_lshlrev_b32 v16, 3, v16')
e('v_lshl_add_u32 v16, v17, 4, v16'); e('v_add_u32 v16, v16, v15')
e(f'v_lshl_add_u32 v{V_A1}, v3, 10, v16')
e('v_and_b32 v16, 1, v4'); e('v_lshl_add_u32 v16, v16, 1, v13'); e('v_add_u32 v16, s82, v16')
e('v_xor_b32 v16, v16, v14'); e('v_lshrrev_b32 v17, 1, v4'); e('v_lshlrev_b32 v17, 3, v17')
e('v_lshl_add_u32 v16, v16, 4, v17'); e('v_add_u32 v16, v16, v15')
e(f'v_lshl_add_u32 v{V_A2}, v3, 9, v16')
e('s_lshl_b32 s82, s57, 12'); e('s_sub_u32 s59, 4096, s82')
VA2 = {}
rr = 52
for p_ in range(4):
    for m_ in range(2):
        e(f's_lshl_b32 s68, s{64+p_}, 6'); e(f's_add_u32 s68, s68, {"s59" if m_ else "s82"}')
        e(f'v_add_u32 v{rr}, s68, v{V_A2}'); VA2[(p_, m_)] = rr; rr += 1
e(f'v_add_u32 v20, 0x10000, v{V_A1}')
stamp(2)
vm_wait_for('S')
e('s_cmp_ge_u32 s2, 16'); e('s_cbranch_scc1 K1_nosig'); e('s_cmp_lg_u32 s4, 0'); e('s_cbranch_scc1 K1_nosig')
e('s_waitcnt vmcnt(0)')
e(f'v_cmp_eq_u32 vcc, 0, v{V_LANE}'); e('s_and_saveexec_b64 s[82:83], vcc')
e('v_mov_b32 v2, 0'); e('v_mov_b32 v13, 1')
e(f'buffer_atomic_add v13, v2, s[{S_DBG}:{S_DBG+3}], 0 offen sc1')
e('s_mov_b64 exec, s[82:83]')
L('K1_nosig')
e('s_barrier')
for j in range(16):
    e(f'v_xor_b32 v13, {2*j}, v19'); e(f'v_lshl_add_u32 v13, v13, 4, v{V_SA}')
    e(f'ds_read_b128 v[{V_S+4*j}:{V_S+4*j+3}], v13')
NEJ = 2
V_ES, V_ED, V_EI = 26, 28, 30
e('v_lshlrev_b32 v2, 2, v0'); e('s_lshl_b32 s59, s2, 11')
for j in range(NEJ):
    e(f's_add_u32 s82, s59, {j*NWG1*2048}'); e(f'v_add_u32 v{V_EI+j}, s82, v2')
    e(f'buffer_load_dword v{V_ES+j}, v{V_EI+j}, s[{S_SRC}:{S_SRC+3}], 0 offen'); vmi('idx')
    e(f'buffer_load_dword v{V_ED+j}, v{V_EI+j}, s[{S_DST}:{S_DST+3}], 0 offen'); vmi('idx')
e('s_waitcnt lgkmcnt(0)')
stamp(3)
e('s_lshl_b32 s88, s80, 16'); e('s_and_b32 s89, s80, 0xffff0000')
e('s_lshl_b32 s90, s81, 16'); e('s_and_b32 s91, s81, 0xffff0000')
e('s_mov_b32 s92, 0x3e22f983'); e('s_mov_b32 s93, 0x40490fdb'); e('s_mov_b32 s94, 0x3e4ccccd')
e('s_mov_b32 s95, 0x40a00000'); e('s_mov_b32 s96, 0x322bcc77'); e('s_mov_b32 s97, 0xbfb8aa3b')
V_PS, V_PD = 40, 44
def posload():
    f = [('WVM', 'idx')]
    for j in range(NEJ):
        for (vi, vp) in ((V_ES + j, V_PS + 2 * j), (V_ED + j, V_PD + 2 * j)):
            f.append([f'v_mul_u32_u24 v13, 6, v{vi}', 'v_and_b32 v13, -4, v13',
                      ('VM', 'pos', f'buffer_load_dwordx2 v[{vp}:{vp+1}], v13, s[{S_POS}:{S_POS+3}], 0 offen')])
    return f
def geom(j):
    R = V_S + 8 * j; T = V_S + 32 + 10 * j; x = T + 9; f = []
    def rb(v): f.extend([f'v_cvt_pk_bf16_f32 v{v}, v{v}, v{v}', f'v_and_b32 v{v}, 0xffff0000, v{v}'])
    for (vi, vp, o) in ((V_ES + j, V_PS + 2 * j, T), (V_ED + j, V_PD + 2 * j, T + 3)):
        f.extend([f'v_and_b32 v{x}, 1, v{vi}', f'v_lshlrev_b32 v{x}, 4, v{x}', f'v_lshrrev_b64 v[{vp}:{vp+1}], v{x}, v[{vp}:{vp+1}]',
                  f'v_lshlrev_b32 v{o}, 16, v{vp}', f'v_and_b32 v{o+1}, 0xffff0000, v{vp}', f'v_lshlrev_b32 v{o+2}, 16, v{vp+1}'])
    for k in range(3): f.append(f'v_sub_f32 v{T+k}, v{T+k}, v{T+3+k}'); rb(T + k)
    for k in range(3): f.append(f'v_mul_f32 v{T+3+k}, v{T+k}, v{T+k}'); rb(T + 3 + k)
    f.extend([f'v_add_f32 v{T+3}, v{T+3}, v{T+4}', f'v_add_f32 v{T+3}, v{T+3}, v{T+5}']); rb(T + 3)
    f.append(f'v_add_f32 v{T+3}, s96, v{T+3}'); rb(T + 3)
    f.extend([f'v_sqrt_f32 v{T+3}, v{T+3}', 's_nop 0']); rb(T + 3)
    f.extend([f'v_rcp_f32 v{T+4}, v{T+3}', 's_nop 0'])
    for k in range(3): f.append(f'v_mul_f32 v{R+3+k}, v{T+k}, v{T+4}'); rb(R + 3 + k)
    f.append(f'v_mul_f32 v{T+5}, s93, v{T+3}'); rb(T + 5)
    f.append(f'v_mul_f32 v{T+5}, s94, v{T+5}'); rb(T + 5)
    f.extend([f'v_mul_f32 v{T+5}, s92, v{T+5}', f'v_fract_f32 v{T+5}, v{T+5}', f'v_cos_f32 v{T+5}, v{T+5}', 's_nop 0']); rb(T + 5)
    f.append(f'v_add_f32 v{T+5}, 1.0, v{T+5}'); rb(T + 5)
    f.append(f'v_mul_f32 v{T+5}, 0.5, v{T+5}'); rb(T + 5)
    for q in range(4):
        y = T + (0, 1, 2, 6)[q]
        f.append(f'v_mul_f32 v{y}, s{88+q}, v{T+3}'); rb(y)
        f.extend([f'v_mul_f32 v{y}, s92, v{y}', f'v_fract_f32 v{y}, v{y}', f'v_sin_f32 v{y}, v{y}', 's_nop 0']); rb(y)
        f.append(f'v_mul_f32 v{y}, v{y}, v{T+4}'); rb(y)
        f.append(f'v_mul_f32 v{y}, v{y}, v{T+5}')
    f.extend([f'v_cvt_pk_bf16_f32 v{R+1}, v{T}, v{T+1}', f'v_cvt_pk_bf16_f32 v{R+2}, v{T+2}, v{T+6}',
              f'v_mov_b32 v{R}, v{V_ES+j}', f'v_mov_b32 v{R+6}, v{V_ED+j}', f'v_mov_b32 v{R+7}, 0'])
    f.extend([f'v_lshlrev_b32 v{T+7}, 2, v{V_ED+j}', f'v_cmp_gt_f32 vcc, s95, v{T+3}', f'v_cmp_gt_u32 s[98:99], s38, v{V_EI+j}',
              f'v_mov_b32 v{T+8}, 1', 's_nop 0', 's_and_b64 vcc, vcc, s[98:99]', f'v_cndmask_b32 v{T+7}, v18, v{T+7}, vcc'])
    return f
def atom(j):
    T = V_S + 32 + 10 * j
    return [('VM', 'atom', f'buffer_atomic_add v{T+8}, v{T+7}, s[{S_CNT}:{S_CNT+3}], 0 offen sc0 sc1')]
e('v_mov_b32 v18, 0x7ffffff0')
e('v_mov_b32 v22, 1.0'); e('v_mov_b32 v23, 1.0')
V_H, V_ACC, V_AF, V_ET = 128, 192, 224, 240
NPF = 3
steps = [(c, j) for c in range(8) for j in range(16)]
def aread(idx):
    c, j = steps[idx]
    slot = c % 4; r = V_AF + 4 * (idx % 4)
    if c < 4:
        base = V_A1; offs = [slot * 32768 + j * 2048 + u * 512 for u in range(2)]
        if slot >= 2: base = 20; offs = [o - 65536 for o in offs]
    else:
        m_ = 1 if (j & 2) else 0
        base = VA2[(j >> 2, m_)]
        offs = [slot * 32768 + (j & 3) * 2048 + u * 1024 - 4096 * m_ for u in range(2)]
        if slot >= 2: base = base + 32; offs = [o - 65536 for o in offs]
    return [('LG', f'a{idx}', f'ds_read_b64_tr_b16 v[{r}:{r+1}], v{base} offset:{offs[0]}'),
            ('LG', f'a{idx}', f'ds_read_b64_tr_b16 v[{r+2}:{r+3}], v{base} offset:{offs[1]}')]
def xread(c):
    return [('LG', f'xr{c}', f'ds_read_b128 v[{V_X+8*(c%2)}:{V_X+8*(c%2)+3}], v{V_XR} offset:{(c%2)*2048}'),
            ('LG', f'xr{c}', f'ds_read_b128 v[{V_X+8*(c%2)+4}:{V_X+8*(c%2)+7}], v{V_XR} offset:{(c%2)*2048+1024}')]
V_X, V_O = 48, 128
def epilogue(c):
    acc = V_ACC + 16 * (c % 2)
    f = []
    if c < 4:
        o = V_H + 16 * c
        if P['PK'] == 2:
            f += [f'v_min3_f32 v21, v{acc}, v{acc+1}, v{acc+2}'] + [f'v_min3_f32 v21, v21, v{acc+3+2*q}, v{acc+4+2*q}' for q in range(6)] + [f'v_min_f32 v21, v21, v{acc+15}']
            for p in range(0, 8, 2):
                xa, xb = acc + 2 * p, acc + 2 * p + 2
                ta, tb, pa = V_ET, V_ET + 2, V_ET + 4
                f += [f'v_pk_mul_f32 v[{ta}:{ta+1}], s[96:97], v[{xa}:{xa+1}] op_sel:[1,0] op_sel_hi:[1,1]', f'v_pk_mul_f32 v[{tb}:{tb+1}], s[96:97], v[{xb}:{xb+1}] op_sel:[1,0] op_sel_hi:[1,1]',
                      f'v_exp_f32 v{ta}, v{ta}', f'v_exp_f32 v{ta+1}, v{ta+1}', f'v_exp_f32 v{tb}, v{tb}', f'v_exp_f32 v{tb+1}, v{tb+1}',
                      f'v_pk_add_f32 v[{ta}:{ta+1}], v[{ta}:{ta+1}], v[22:23]', f'v_pk_add_f32 v[{tb}:{tb+1}], v[{tb}:{tb+1}], v[22:23]',
                      f'v_mul_f32 v{pa}, v{ta}, v{ta+1}', f'v_mul_f32 v{pa+1}, v{tb}, v{tb+1}',
                      f'v_rcp_f32 v{pa}, v{pa}', f'v_rcp_f32 v{pa+1}, v{pa+1}',
                      f'v_pk_mul_f32 v[{ta}:{ta+1}], v[{ta}:{ta+1}], v[{pa}:{pa+1}] op_sel:[1,0] op_sel_hi:[0,0]',
                      f'v_pk_mul_f32 v[{tb}:{tb+1}], v[{tb}:{tb+1}], v[{pa}:{pa+1}] op_sel:[1,1] op_sel_hi:[0,1]',
                      f'v_pk_mul_f32 v[{ta}:{ta+1}], v[{xa}:{xa+1}], v[{ta}:{ta+1}]', f'v_pk_mul_f32 v[{tb}:{tb+1}], v[{xb}:{xb+1}], v[{tb}:{tb+1}]',
                      f'v_cvt_pk_bf16_f32 v{o + p}, v{ta}, v{ta+1}', f'v_cvt_pk_bf16_f32 v{o + p + 1}, v{tb}, v{tb+1}']
            g = ['v_cmp_gt_f32 vcc, 0xc22c0000, v21', 's_nop 0', f's_cbranch_vccz K1_silu{c}']
            for p in range(8):
                x0, x1 = acc + 2 * p, acc + 2 * p + 1
                t0, t1 = V_ET, V_ET + 1
                g += [f'v_mul_f32 v{t0}, s97, v{x0}', f'v_mul_f32 v{t1}, s97, v{x1}', f'v_exp_f32 v{t0}, v{t0}', f'v_exp_f32 v{t1}, v{t1}', 's_nop 0',
                      f'v_add_f32 v{t0}, 1.0, v{t0}', f'v_add_f32 v{t1}, 1.0, v{t1}', f'v_rcp_f32 v{t0}, v{t0}', f'v_rcp_f32 v{t1}, v{t1}', 's_nop 0',
                      f'v_mul_f32 v{t0}, v{x0}, v{t0}', f'v_mul_f32 v{t1}, v{x1}, v{t1}', f'v_cvt_pk_bf16_f32 v{o + p}, v{t0}, v{t1}']
            g.append(('LBL', f'K1_silu{c}'))
            f.append(g)
        for p in (range(0, 8, 2) if P['PK'] == 1 else []):
            xa, xb = acc + 2 * p, acc + 2 * p + 2
            ta, tb = V_ET, V_ET + 2
            f += [f'v_pk_mul_f32 v[{ta}:{ta+1}], s[96:97], v[{xa}:{xa+1}] op_sel:[1,0] op_sel_hi:[1,1]', f'v_pk_mul_f32 v[{tb}:{tb+1}], s[96:97], v[{xb}:{xb+1}] op_sel:[1,0] op_sel_hi:[1,1]',
                  f'v_exp_f32 v{ta}, v{ta}', f'v_exp_f32 v{ta+1}, v{ta+1}', f'v_exp_f32 v{tb}, v{tb}', f'v_exp_f32 v{tb+1}, v{tb+1}',
                  f'v_pk_add_f32 v[{ta}:{ta+1}], v[{ta}:{ta+1}], v[22:23]', f'v_pk_add_f32 v[{tb}:{tb+1}], v[{tb}:{tb+1}], v[22:23]',
                  f'v_rcp_f32 v{ta}, v{ta}', f'v_rcp_f32 v{ta+1}, v{ta+1}', f'v_rcp_f32 v{tb}, v{tb}', f'v_rcp_f32 v{tb+1}, v{tb+1}',
                  f'v_pk_mul_f32 v[{ta}:{ta+1}], v[{xa}:{xa+1}], v[{ta}:{ta+1}]', f'v_pk_mul_f32 v[{tb}:{tb+1}], v[{xb}:{xb+1}], v[{tb}:{tb+1}]',
                  f'v_cvt_pk_bf16_f32 v{o + p}, v{ta}, v{ta+1}', f'v_cvt_pk_bf16_f32 v{o + p + 1}, v{tb}, v{tb+1}']
        for p in (range(0, 8, 2) if P['PK'] == 3 else []):
            x = acc + 2 * p; t = V_ET
            f += [f'v_mul_f32 v{t+q}, s97, v{x+q}' for q in range(4)] + [f'v_exp_f32 v{t+q}, v{t+q}' for q in range(4)]
            f += [f'v_add_f32 v{t+q}, 1.0, v{t+q}' for q in range(4)] + [f'v_rcp_f32 v{t+q}, v{t+q}' for q in range(4)]
            f += [f'v_mul_f32 v{t+q}, v{x+q}, v{t+q}' for q in range(4)]
            f += [f'v_cvt_pk_bf16_f32 v{o + p}, v{t}, v{t+1}', f'v_cvt_pk_bf16_f32 v{o + p + 1}, v{t+2}, v{t+3}']
        for p in ([] if P['PK'] else range(8)):
            x0, x1 = acc + 2 * p, acc + 2 * p + 1
            t0, t1 = V_ET + 2 * (p % 2), V_ET + 2 * (p % 2) + 1
            f += [f'v_mul_f32 v{t0}, s97, v{x0}', f'v_mul_f32 v{t1}, s97, v{x1}',
                  f'v_exp_f32 v{t0}, v{t0}', f'v_exp_f32 v{t1}, v{t1}',
                  f'v_add_f32 v{t0}, 1.0, v{t0}', f'v_add_f32 v{t1}, 1.0, v{t1}',
                  f'v_rcp_f32 v{t0}, v{t0}', f'v_rcp_f32 v{t1}, v{t1}',
                  f'v_mul_f32 v{t0}, v{x0}, v{t0}', f'v_mul_f32 v{t1}, v{x1}, v{t1}',
                  f'v_cvt_pk_bf16_f32 v{o + p}, v{t0}, v{t1}']
        f += [('LG', f'xw{c}', f'ds_write_b128 v{V_XW}, v[{o}:{o+3}] offset:{(c%2)*2048}'),
              ('LG', f'xw{c}', f'ds_write_b128 v{V_XW}, v[{o+4}:{o+7}] offset:{(c%2)*2048+1024}')]
    else:
        for q in range(2):
            b = V_ET + 4 * q
            for p in range(4): f.append(f'v_cvt_pk_bf16_f32 v{b+p}, v{acc + 8*q + 2*p}, v{acc + 8*q + 2*p + 1}')
            f.append(('LG', f'sw{c}', f'ds_write_b128 v{V_SW + q}, v[{b}:{b+3}]'))
        for i in range(2): f.append(('LG', f'sr{c}_{i}', f'ds_read_b128 v[{V_ET+8+4*i}:{V_ET+8+4*i+3}], v{V_SR} offset:{1024*i}'))
        f += ['s_nop 0'] * 3
        for i in range(2):
            f.append([('WLG', f'sr{c}_{i}'), ('VM', 'st', f'buffer_store_dwordx4 v[{V_ET+8+4*i}:{V_ET+8+4*i+3}], v{V_PA}, s[{S_PHI}:{S_PHI+3}], s{69+2*(c-4)+i} offen {P["ST_PHI"]}')])
    return f
def xread_into(c):
    o = V_H + 16 * c + 8
    return [('LG', f'xr{c}', f'ds_read_b128 v[{o}:{o+3}], v{V_XR} offset:{(c%2)*2048}'),
            ('LG', f'xr{c}', f'ds_read_b128 v[{o+4}:{o+7}], v{V_XR} offset:{(c%2)*2048+1024}')]
for c_ in range(4):
    for i in range(2): e(f's_add_u32 s{69+2*c_+i}, s{64+c_}, {i*16*1536}')
pending = []; extra = []
for idx, (c, j) in enumerate(steps):
    if j == 0:
        if f'dma{c}' in vm: vm_wait_for(f'dma{c}')
        if c in (2, 3, 4) : lg_wait_for(f'xw{ {2:0, 3:1, 4:(2 if P["DEF3"] else 3)}[c] }')
        e('s_barrier')
        if c in (0, 1, 4, 7): stamp({0: 5, 1: 6, 4: 7, 7: 8}[c])
        be = 1 if (c >= 4 and P['DUMMYT']) else 0
        for k in range(NPF): emit_f(aread(idx + k))
        if c == 2: emit_f(xread_into(0))
        if c == 3: emit_f(xread_into(1))
        if c == 4: emit_f(xread_into(2) + ([] if P['DEF3'] else xread_into(3)))
        if c == 5:
            for q_ in range(8): e(f'v_add_u32 v{84+q_}, 0x10000, v{52+q_}')
        if c == 0: extra += dma_list(2) + dma_list(3)
        if 1 <= c <= 4: extra += dma_list(c + 3)
        if c == 1 and not P['NOEDGE']: extra += posload()
        if c == 3 and not P['NOEDGE']:
            e('v_mov_b32 v13, 0')
            e(f'buffer_load_dword v38, v13, s[{S_DBG}:{S_DBG+3}], 0 offen sc0 sc1'); vmi('poll')
        if c == 4 and not P['NOEDGE']:
            extra += [('WVM', 'pos')]
            for jj in range(NEJ): extra += geom(jj)
        if c == 7 and not P['NOEDGE']:
            vm_wait_for('poll')
            L('K1_poll')
            e('v_readfirstlane_b32 s82, v38'); e('s_cmp_ge_u32 s82, 16'); e('s_cbranch_scc1 K1_polled')
            e('s_sleep 4'); e('v_mov_b32 v13, 0')
            e(f'buffer_load_dword v38, v13, s[{S_DBG}:{S_DBG+3}], 0 offen sc0 sc1')
            e('s_waitcnt vmcnt(0)'); e('s_branch K1_poll')
            L('K1_polled')
            assert not extra, len(extra)
            for jj in range(NEJ): emit_f(atom(jj))
    lg_wait_for(f'a{idx}')
    if c == 4 and j == 8: lg_wait_for('xr2' if P['DEF3'] else 'xr3')
    if c == 4 and j == 14 and P['DEF3']: lg_wait_for('xr3')
    acc = V_ACC + 16 * (c % 2); a = V_AF + 4 * (idx % 4)
    if c < 4: bsrc = V_S + 4 * j
    else:
        t = j >> 1
        bsrc = f'HS{t}_{j&1}'
    cin = '0' if j == 0 else f'v[{acc}:{acc+15}]'
    if c < 4:
        e(f'v_mfma_f32_32x32x16_bf16 v[{acc}:{acc+15}], v[{a}:{a+3}], v[{bsrc}:{bsrc+3}], {cin}')
    else:
        b = V_H + 8 * t + 4 * (j & 1)
        e(f'v_mfma_f32_32x32x16_bf16 v[{acc}:{acc+15}], v[{a}:{a+3}], v[{b}:{b+3}], {cin}')
    nxt = idx + NPF
    if nxt < len(steps) and steps[nxt][0] == c: emit_f(aread(nxt))
    if j == 0 and c > 0 and (c != 4 or P['DEF3']):
        assert not pending
        pending = epilogue(c - 1)
    nf = P['FILL'] if c < 4 else P['FILL2']
    if c == 4 and P['DEF3']: nf = 9
    if j >= 2:
        n = nf if j < 15 else len(pending)
        if c == 4 and j == 11 and P['DEF3']: n = len(pending)
        k = min(n, len(pending))
        for _ in range(k): emit_f(pending.pop(0))
        nx = (1 if c < 4 else max(0, nf - k))
        if c == 4 and P['DEF3'] and j < 12: nx = 1 if j < 6 else 0
        for _ in range(min(nx, len(extra))): emit_f(extra.pop(0))
    if c == 4 and j == 11 and P['DEF3']:
        assert not pending
        lg_wait_for('xw3'); e('s_barrier'); emit_f(xread_into(3))
    if c == 3 and j == 15 and not P['DEF3']:
        e('s_barrier'); e('s_nop 15')
        emit_f(epilogue(3))
assert not extra, len(extra)
e('s_nop 15')
emit_f(epilogue(7))
stamp(9)
if not P['NOEDGE']:
    vm_wait_for('atom')
    for j in range(NEJ):
        R = V_S + 8 * j; T = V_S + 32 + 10 * j
        e(f'v_cmp_gt_u32 vcc, v18, v{T+7}'); e(f'v_cmp_gt_u32 s[82:83], {CAP}, v{T+8}')
        e(f'v_lshlrev_b32 v2, 10, v{V_ED+j}'); e(f'v_lshl_add_u32 v2, v{T+8}, 5, v2')
        e('s_and_b64 s[84:85], vcc, s[82:83]'); e('s_andn2_b64 s[86:87], vcc, s[82:83]')
        e('v_cndmask_b32 v2, v18, v2, s[84:85]')
        e(f'buffer_store_dwordx4 v[{R}:{R+3}], v2, s[{S_BKT}:{S_BKT+3}], 0 offen')
        e(f'buffer_store_dwordx4 v[{R+4}:{R+7}], v2, s[{S_BKT}:{S_BKT+3}], 0 offen offset:16')
        e('s_cmp_eq_u64 s[86:87], 0'); e(f's_cbranch_scc1 K1_noovf{j}')
        e('s_mov_b64 exec, s[86:87]')
        e(f'v_mov_b32 v2, {N*4}'); e('v_mov_b32 v4, 1')
        e(f'buffer_atomic_add v4, v2, s[{S_CNT}:{S_CNT+3}], 0 offen sc0 sc1')
        e('s_waitcnt vmcnt(0)')
        e('v_lshlrev_b32 v2, 5, v4')
        e(f'buffer_store_dwordx4 v[{R}:{R+3}], v2, s[{S_OVF}:{S_OVF+3}], 0 offen')
        e(f'buffer_store_dwordx4 v[{R+4}:{R+7}], v2, s[{S_OVF}:{S_OVF+3}], 0 offen offset:16')
        e('s_mov_b64 exec, -1')
        L(f'K1_noovf{j}')
e('s_cmp_lg_u32 s2, 16'); e('s_cbranch_scc1 K1_nopack2')
e('s_cmp_ge_u32 s4, 3'); e('s_cbranch_scc1 K1_nopack2')
srd_off(S_WPK, 78, 79, WS_WPK, 6144)
e('s_mov_b32 s82, 0x05040100'); e('s_mov_b32 s83, 0x07060302')
e('s_lshl_b32 s7, s4, 11')
e(f'v_lshl_add_u32 v2, v{V_LANE}, 4, s7')
for jp in range(2):
    a_, b_ = PKR[2 * jp], PKR[2 * jp + 1]
    for c in range(4):
        e(f'v_perm_b32 v{20+4*jp+c}, v{b_+(c>>1)}, v{a_+(c>>1)}, s{82+(c&1)}')
    e(f'buffer_store_dwordx4 v[{20+4*jp}:{23+4*jp}], v2, s[{S_WPK}:{S_WPK+3}], 0 offen offset:{jp*1024}')
L('K1_nopack2')
rstamp(1)
L('K1_end')
e('s_endpgm')

kstart(K2)
NRND = (DEPTH + 1) // 2
e(f's_cmp_ge_u32 s2, {N // K2W}'); e('s_cbranch_scc1 K2_end')
e('s_load_dwordx2 s[4:5], s[0:1], 0')
e('s_load_dwordx2 s[6:7], s[0:1], 64')
e('s_load_dwordx2 s[8:9], s[0:1], 80')
e('v_lshrrev_b32 v1, 6, v0'); e('v_and_b32 v0, 63, v0'); e('v_readfirstlane_b32 s3, v1')
e(f's_mul_i32 s2, s2, {K2W}'); e('s_add_u32 s2, s2, s3')
e('v_lshlrev_b32 v1, 3, v0')
e('v_lshlrev_b32 v2, 4, v0')
e('s_waitcnt lgkmcnt(0)')
e(f's_add_u32 s10, s8, {WS_CNT}'); e('s_addc_u32 s11, s9, 0')
e(f's_add_u32 s12, s8, {WS_BKT}'); e('s_addc_u32 s13, s9, 0')
e('s_lshl_b32 s14, s2, 2'); e('s_lshl_b32 s15, s2, 10')
e('s_load_dword s16, s[10:11], s14')
RS = 40
for i in range(0, DEPTH, 2):
    if i + 1 < DEPTH: e(f's_load_dwordx16 s[{RS+8*i}:{RS+8*i+15}], s[12:13], s15 offset:{32*i}')
    else: e(f's_load_dwordx8 s[{RS+8*i}:{RS+8*i+7}], s[12:13], s15 offset:{32*i}')
SV, OUT, PHI, WPK = 20, 24, 28, 32
srd(SV, 4, 5, N * 2048); srd(OUT, 6, 7, N * 2048); srd(PHI, 8, 9, PHI_BYTES); srd_off(WPK, 8, 9, WS_WPK, 6144)
e('s_lshl_b32 s17, s2, 11')
VW, VACC, VB, VT = 4, 28, 44, 44 + 12 * DEPTH
for g in range(4):
    e(f'buffer_load_dwordx2 v[{VB+2*g}:{VB+2*g+1}], v1, s[{SV}:{SV+3}], s17 offen offset:{512*g}')
e('s_waitcnt lgkmcnt(0)')
e('s_cmp_eq_u32 s16, 0'); e('s_cbranch_scc0 K2_some')
e('s_waitcnt vmcnt(0)')
for g in range(4):
    e(f'buffer_store_dwordx2 v[{VB+2*g}:{VB+2*g+1}], v1, s[{OUT}:{OUT+3}], s17 offen offset:{512*g} {P["ST_OUT"]}')
e('s_endpgm')
L('K2_some')
for q in range(6):
    e(f'buffer_load_dwordx4 v[{VW+4*q}:{VW+4*q+3}], v2, s[{WPK}:{WPK+3}], 0 offen offset:{1024*(q%4)}' if q < 4 else
      f'buffer_load_dwordx4 v[{VW+4*q}:{VW+4*q+3}], v2, s[{WPK}:{WPK+3}], s19 offen offset:{1024*(q%4)}')
    if q == 0: e('s_movk_i32 s19, 4096')
e('s_waitcnt vmcnt(6)')
for g in range(4):
    for p in range(2):
        e(f'v_lshlrev_b32 v{VACC+4*g+2*p}, 16, v{VB+2*g+p}'); e(f'v_and_b32 v{VACC+4*g+2*p+1}, 0xffff0000, v{VB+2*g+p}')
e(f's_min_u32 s18, s16, {CAP}')
def issue(s):
    r = RS + 8 * s; b = VB + 12 * s
    e(f's_mul_i32 s34, s{r}, 1536'); e(f's_lshl_b32 s35, s{r}, 11')
    for g in range(3): e(f'buffer_load_dwordx2 v[{b+2*g}:{b+2*g+1}], v1, s[{PHI}:{PHI+3}], s34 offen offset:{512*g}')
    for g in range(3): e(f'buffer_load_dwordx2 v[{b+6+2*g}:{b+6+2*g+1}], v1, s[{SV}:{SV+3}], s35 offen offset:{512*(g+1)}')
def process(r, b):
    t = VT
    def dots(g, o):
        for c in range(4): e(f'v_dot2_f32_bf16 v{o+c}, v{VW+8*g+c}, s{r+1}, 0')
        for c in range(4): e(f'v_dot2_f32_bf16 v{o+c}, v{VW+8*g+4+c}, s{r+2}, v{o+c}')
    def unpack(src, o):
        for p in range(2):
            e(f'v_lshlrev_b32 v{o+2*p}, 16, v{src+p}'); e(f'v_and_b32 v{o+2*p+1}, 0xffff0000, v{src+p}')
    dots(0, t); unpack(b, t + 4)
    for c in range(4): e(f'v_fmac_f32 v{VACC+c}, v{t+c}, v{t+4+c}')
    dots(2, t); unpack(b + 4, t + 4)
    for c in range(4): e(f'v_mul_f32 v{t+c}, v{t+c}, v{t+4+c}')
    for k in range(3):
        for c in range(4): e(f'v_fmac_f32 v{VACC+4+4*k+c}, s{r+3+k}, v{t+c}')
    dots(1, t); unpack(b + 2, t + 4)
    for c in range(4): e(f'v_mul_f32 v{t+c}, v{t+c}, v{t+4+c}')
    for k in range(3):
        unpack(b + 6 + 2 * k, t + 4)
        for c in range(4): e(f'v_fmac_f32 v{VACC+4+4*k+c}, v{t+c}, v{t+4+c}')
L('K2_round')
for m in range(1, DEPTH):
    e(f's_cmp_eq_u32 s18, {m}'); e(f's_cbranch_scc1 K2_I{m-1}')
for s in range(DEPTH - 1, -1, -1):
    L(f'K2_I{s}'); issue(s)
for m in range(1, DEPTH):
    e(f's_cmp_eq_u32 s18, {m}'); e(f's_cbranch_scc1 K2_B{m-1}')
for s in range(DEPTH - 1, -1, -1):
    L(f'K2_B{s}'); e(f's_waitcnt vmcnt({6*s})'); process(RS + 8 * s, VB + 12 * s)
e(f's_cmp_le_u32 s18, {DEPTH}'); e('s_cbranch_scc1 K2_bdone')
e(f's_sub_u32 s18, s18, {DEPTH}'); e(f's_add_u32 s15, s15, {32*DEPTH}')
for i in range(0, DEPTH, 2):
    if i + 1 < DEPTH: e(f's_load_dwordx16 s[{RS+8*i}:{RS+8*i+15}], s[12:13], s15 offset:{32*i}')
    else: e(f's_load_dwordx8 s[{RS+8*i}:{RS+8*i+7}], s[12:13], s15 offset:{32*i}')
e('s_waitcnt lgkmcnt(0)')
e('s_branch K2_round')
L('K2_bdone')
e(f's_cmp_le_u32 s16, {CAP}'); e('s_cbranch_scc1 K2_fin')
e(f's_load_dword s18, s[10:11], {N*4}')
e(f's_add_u32 s12, s8, {WS_OVF}'); e('s_addc_u32 s13, s9, 0')
e('s_mov_b32 s15, 0')
e('s_waitcnt lgkmcnt(0)')
e('s_lshl_b32 s18, s18, 5')
L('K2_ovf')
e('s_cmp_ge_u32 s15, s18'); e('s_cbranch_scc1 K2_fin')
e(f's_load_dwordx8 s[{RS}:{RS+7}], s[12:13], s15')
e('s_add_u32 s15, s15, 32')
e('s_waitcnt lgkmcnt(0)')
e(f's_cmp_eq_u32 s{RS+6}, s2'); e('s_cbranch_scc0 K2_ovf')
issue(0); e('s_waitcnt vmcnt(0)'); process(RS, VB)
e('s_branch K2_ovf')
L('K2_fin')
for g in range(4):
    for p in range(2):
        e(f'v_cvt_pk_bf16_f32 v{VT+2*(g%2)+p}, v{VACC+4*g+2*p}, v{VACC+4*g+2*p+1}')
    e(f'buffer_store_dwordx2 v[{VT+2*(g%2)}:{VT+2*(g%2)+1}], v1, s[{OUT}:{OUT+3}], s17 offen offset:{512*g} {P["ST_OUT"]}')
    if g == 1: e('s_nop 1')
L('K2_end')
e('s_endpgm')

out.append('.section .rodata,"a"')
def desc(name, vg, sg):
    out.append('.p2align 6'); out.append(f'.amdhsa_kernel {name}')
    out.append(f'  .amdhsa_next_free_vgpr {vg}'); out.append(f'  .amdhsa_next_free_sgpr {sg}')
    out.append(f'  .amdhsa_accum_offset {(vg+3)//4*4}')
    out.append('  .amdhsa_group_segment_fixed_size 0'); out.append('  .amdhsa_kernarg_size 88')
    out.append('  .amdhsa_user_sgpr_count 2'); out.append('  .amdhsa_user_sgpr_kernarg_segment_ptr 1')
    out.append('  .amdhsa_system_sgpr_workgroup_id_x 1'); out.append('.end_amdhsa_kernel')
desc(K1, 256, 102)
desc(K2, VT + 8, RS + 8 * DEPTH)
open(sys.argv[1], 'w').write('\n'.join(out) + '\n')
print('K2 vgprs', VT + 8, 'lines', len(out))
```
